```python
import torch

def _softmax(x, axis=-1):
    return torch.softmax(x, dim=axis)
def _gelu(x):
    return torch.nn.functional.gelu(x, approximate="tanh")
def _silu(x):
    return torch.nn.functional.silu(x)
def _sigmoid(x):
    return torch.sigmoid(x)
def _layernorm(x, axis=-1, eps=1e-5):
    m = x.mean(dim=axis, keepdim=True)
    v = x.var(dim=axis, keepdim=True, unbiased=False)
    return (x - m) / torch.sqrt(v + eps)
def _scatter_add(tgt, idx, src, axis=0):
    return tgt.clone().index_add_(axis, idx, src)
def _segment_sum(src, seg, n):
    out = torch.zeros((n,) + src.shape[1:], dtype=src.dtype)
    return out.index_add_(0, seg, src)
def _pad(x, pw):
    flat = tuple(v for pair in reversed(pw) for v in pair)
    return torch.nn.functional.pad(x, flat)

kernel_name = 'sequential_preLN__mha_block__glu_gated_geglu__prompt'

def setup_inputs():

    _w = (lambda a: (lambda t: t.to(torch.bfloat16) if t.is_floating_point() else t)(torch.as_tensor(a)))
    def _A_setup():
        B, S, D, H = 1, 2048, 1024, 32
        return {
            "x": _w((lambda *s: torch.randn(*s, dtype=torch.bfloat16) * 0.05)(B, S, D)),
            "wqkv": _w((lambda *s: torch.randn(*s, dtype=torch.bfloat16) * 0.05)(D, 3 * D)),
            "wo": _w((lambda *s: torch.randn(*s, dtype=torch.bfloat16) * 0.05)(D, D)),
        }
    _A_in = _A_setup()

    def _B_setup():
        B, S, Dm, Df = 1, 2048, 1024, 3584
        return {
            "x": _w((lambda *s: torch.randn(*s, dtype=torch.bfloat16) * 0.05)(B, S, Dm)),
            "w_gate": _w((lambda *s: torch.randn(*s, dtype=torch.bfloat16) * 0.8)(Dm, Df) * (Dm ** -0.5)),
            "w_up": _w((lambda *s: torch.randn(*s, dtype=torch.bfloat16) * 0.8)(Dm, Df) * (Dm ** -0.5)),
            "w_down": _w((lambda *s: torch.randn(*s, dtype=torch.bfloat16) * 0.8)(Df, Dm) * (Df ** -0.5)),
        }
    _B_in = _B_setup()

    return {
        "A_x": _A_in["x"],
        "A_wqkv": _A_in["wqkv"],
        "A_wo": _A_in["wo"],
        "B_x": _B_in["x"],
        "B_w_gate": _B_in["w_gate"],
        "B_w_up": _B_in["w_up"],
        "B_w_down": _B_in["w_down"],
    }

def reference(A_x, A_wqkv, A_wo, B_x, B_w_gate, B_w_up, B_w_down):
    def _A_ref(x, wqkv, wo):
        B, S, D = x.shape
        H = 32
        Dh = D // H
        qkv = (lambda x, *d: x.permute(*d))((x @ wqkv).reshape(B, S, 3, H, Dh), 2, 0, 3, 1, 4)
        q, k, v = qkv[0], qkv[1], qkv[2]
        scores = torch.einsum("bhqd,bhkd->bhqk", q, k) * (Dh ** -0.5)
        p = _softmax(scores, axis=-1)
        o = torch.einsum("bhqk,bhkd->bhqd", p, v)
        return (lambda x, *d: x.permute(*d))(o, 0, 2, 1, 3).reshape(B, S, D) @ wo

    def _B_ref(x, w_gate, w_up, w_down):
        g = torch.einsum("bsd,df->bsf", x, w_gate)
        u = torch.einsum("bsd,df->bsf", x, w_up)
        h = _gelu(g) * u
        return torch.einsum("bsf,fd->bsd", h, w_down)

    x = A_x
    h = x + _A_ref(_layernorm(x, axis=-1), A_wqkv, A_wo)
    h2 = h + _B_ref(_layernorm(h, axis=-1), B_w_gate, B_w_up, B_w_down)
    return h2
```

```python
from kb import Kern, Inst, check_trace

S_TOK, D, H, DH, DF = 2048, 1024, 32, 32, 3584

WS_XN = 0x0000000
WS_Q = 0x0400000
WS_KV = 0x0800000
WS_O = 0x1000000
WS_H = 0x1400000
WS_STAT = 0x1800000
WS_CS = 0x1880000
WS_WGU = 0x1900000
WS_HH = 0x2800000
WS_SIZE = 0x10000000

KA_X, KA_WQKV, KA_WO, KA_BX, KA_WG, KA_WU, KA_WD, KA_OUT, KA_DBG, KA_WS = [8 * i for i in range(10)]


def v(i, n=1):
    return f"v{i}" if n == 1 else f"v[{i}:{i+n-1}]"


def a_(i, n=1):
    return f"a{i}" if n == 1 else f"a[{i}:{i+n-1}]"


def s(i, n=1):
    return f"s{i}" if n == 1 else f"s[{i}:{i+n-1}]"


def srd_from(k, d, base, nbytes):
    k(f"s_mov_b32 s{d}, s{base}")
    k(f"s_mov_b32 s{d+1}, s{base+1}")
    k(f"s_mov_b32 s{d+2}, {nbytes:#x}")
    k(f"s_mov_b32 s{d+3}, 0x00020000")


def load_srds(k, lst, tmp=40):
    for i, (d, off, nb) in enumerate(lst):
        k(f"s_load_dwordx2 s[{tmp+2*i}:{tmp+2*i+1}], s[0:1], {off}")
    k("s_waitcnt lgkmcnt(0)")
    for i, (d, off, nb) in enumerate(lst):
        srd_from(k, d, tmp + 2 * i, nb)


def kdesc(name, vgpr, agpr=0, sgpr=96):
    acc = (vgpr + 3) // 4 * 4
    tot = acc + agpr if agpr else vgpr
    return (f".p2align 6\n.amdhsa_kernel {name}\n"
            f"  .amdhsa_next_free_vgpr {tot}\n"
            f"  .amdhsa_next_free_sgpr {sgpr}\n"
            f"  .amdhsa_accum_offset {acc}\n"
            f"  .amdhsa_group_segment_fixed_size 0\n"
            f"  .amdhsa_kernarg_size 80\n"
            f"  .amdhsa_user_sgpr_count 2\n"
            f"  .amdhsa_user_sgpr_kernarg_segment_ptr 1\n"
            f"  .amdhsa_system_sgpr_workgroup_id_x 1\n"
            f".end_amdhsa_kernel\n")


def khead(name):
    return f".globl {name}\n.p2align 8\n.type {name},@function\n{name}:\n"


HEADER = """; Kernarg layout for this problem (80 bytes, ptrs only, base s[0:1]):
"""


def build_file(kernels):
    out = HEADER
    for kd in kernels:
        out += f"; @launch kernel={kd['name']} grid=({kd['grid']},1,1) block=({kd['block']},1,1) lds={kd['lds']}\n"
    out += '.amdgcn_target "amdgcn-amd-amdhsa--gfx950"\n.text\n'
    seen = set()
    for kd in kernels:
        if kd["name"] in seen:
            continue
        seen.add(kd["name"])
        out += khead(kd["name"]) + kd["kern"].text()
    out += '.section .rodata,"a"\n'
    seen = set()
    for kd in kernels:
        if kd["name"] in seen:
            continue
        seen.add(kd["name"])
        out += kdesc(kd["name"], kd["vgpr"], kd.get("agpr", 0), kd.get("sgpr", 96))
    return out


def allreduce_rows(k, x, tmp, op="v_add_f32"):
    k(f"v_mov_b32 v{tmp}, v{x}")
    k(f"v_permlane16_swap_b32 v{x}, v{tmp}")
    k(f"{op} v{x}, v{x}, v{tmp}")
    k(f"v_mov_b32 v{tmp}, v{x}")
    k(f"v_permlane32_swap_b32 v{x}, v{tmp}")
    k(f"{op} v{x}, v{x}, v{tmp}")


import struct


def f2h(x):
    return "0x%08x" % struct.unpack("<I", struct.pack("<f", x))[0]
```

```python
from kb import Kern, Inst


def T(text, **tags):
    return Inst(text, dict(tags))


class Loop:
    def __init__(self, name, n, KS, R, nd, reads, mfmas, dma, cnt_sreg, rpos=None, dpos=None, extra=None,
                 prio=None):
        self.name, self.n, self.KS, self.R, self.nd = name, n, KS, R, nd
        self.reads, self.mfmas, self.dma = reads, mfmas, dma
        self.cnt = cnt_sreg
        self.rpos = rpos
        self.dpos = dpos
        self.extra = extra
        self.prio = prio
        self.nm = len(mfmas(0))

    def wait(self, vm=None, lg=None):
        parts = []
        if vm is not None:
            parts.append(f"vmcnt({vm})")
        if lg is not None:
            parts.append(f"lgkmcnt({lg})")
        return T("s_waitcnt " + " ".join(parts))

    def prologue_dma(self, k):
        for st in range(min(self.R - 1, self.n)):
            for g in self.dma(st % self.R, st):
                k.add(g)

    def prologue_sync(self, k):
        nout = min(self.R - 1, self.n) - 1
        k.add([self.wait(vm=nout * self.nd), T("s_barrier")])
        k.add(self.reads(0, 0, 0, 0))
        if self.R - 1 < self.n:
            for rel, p, su, rest in self._dma_items(self.R - 1):
                if rel == 0:
                    k.add(su + rest)

    def _dma_items(self, st):
        groups = self.dma(st % self.R, st)
        items = []
        for g in groups:
            cur = []
            for x in g:
                cur.append(x)
                if x.tags.get("dma"):
                    items.append(cur)
                    cur = []
            if cur:
                items[-1] = items[-1] + cur
        out = []
        nm = self.nm
        for i, it in enumerate(items):
            p = self.dpos(i, len(items), nm)
            assert 0 <= p < self.KS * nm, (p, self.KS, nm)
            su = [x for x in it if not x.tags.get("dma") and not x.tags.get("bump")]
            rest = [x for x in it if x.tags.get("dma") or x.tags.get("bump")]
            out.append((p // nm, p % nm, su, rest))
        return out

    def step(self, k, st, ks, static_st):
        KS, R, n, nd = self.KS, self.R, self.n, self.nd
        t = static_st * KS + ks
        buf = t & 1
        slot = static_st % R
        last = (ks == KS - 1)
        mf = self.mfmas(buf)
        nm = len(mf)
        fill = [[] for _ in range(nm)]
        pre = []
        has_next = not (last and static_st == n - 1)
        if last and static_st + 1 < n:
            nout = min(n - 1, static_st + R - 1) - (static_st + 1)
            pre = [self.wait(vm=nout * nd, lg=0), T("s_barrier")]
        else:
            pre = [self.wait(lg=0)]
        if has_next:
            if last:
                rd = self.reads((static_st + 1) % R, 0, buf ^ 1, static_st + 1)
            else:
                rd = self.reads(slot, ks + 1, buf ^ 1, static_st)
            for i, x in enumerate(rd):
                p = self.rpos(i, len(rd), nm) if self.rpos else min(i, nm - 1)
                fill[min(p, nm - 1)].append(x)
        return pre, mf, fill

    def emit_stage(self, k, static_st):
        KS, R, n = self.KS, self.R, self.n
        for ks in range(KS):
            pre, mf, fill = self.step(k, None, ks, static_st)
            nm = len(mf)
            if ks == KS - 1:
                tgt, rel = static_st + R, 0
            else:
                tgt, rel = static_st - 1 + R, ks + 1
            if tgt < n:
                for r, p, su, rest in self._dma_items(tgt):
                    if r != rel:
                        continue
                    if su and p > 0:
                        fill[p - 1].extend(su)
                        fill[p].extend(rest)
                    else:
                        fill[p].extend(su + rest)
            if self.extra:
                for p, x in self.extra(static_st, ks):
                    fill[min(p, nm - 1)].append(x)
            k.add(pre)
            for i, m in enumerate(mf):
                k.add([m])
                k.add(fill[i])

    def period(self):
        p = self.R
        if (self.R * self.KS) % 2:
            p *= 2
        return p

    def emit(self, k, unrolled=False):
        n, R = self.n, self.R
        P = self.period()
        iters = max(0, (n - R) // P)
        if unrolled or iters <= 1:
            for st in range(n):
                self.emit_stage(k, st)
            return
        lab = f"L_{self.name}_loop"
        k(f"s_mov_b32 s{self.cnt}, {iters}")
        k(f"{lab}:")
        for st in range(P):
            self.emit_stage(k, st)
        k(f"s_sub_u32 s{self.cnt}, s{self.cnt}, 1")
        k(f"s_cmp_lg_u32 s{self.cnt}, 0")
        k(f"s_cbranch_scc1 {lab}")
        for st in range(iters * P, n):
            self.emit_stage(k, st)
```

```python
from common import *
from gemm import T, Loop
from k_prep import wave_lane
import math

K1_R = 3
SLOT1 = 40960


def kernel_K1(R=K1_R, unrolled=False, check=False):
    k = Kern("qkv_kernel")
    stamp_begin(k)
    k("s_cmp_ge_u32 s2, 256")
    k("s_cbranch_scc1 K1_END")
    wave_lane(k)
    load_srds(k, [(4, KA_WQKV, 1024 * 3072 * 2), (8, KA_WS, WS_SIZE)])
    k("s_and_b32 s16, s2, 7")
    k("s_lshr_b32 s17, s2, 3")
    k("s_lshr_b32 s18, s16, 2")
    k("s_lshl_b32 s18, s18, 3")
    k("s_and_b32 s19, s17, 7")
    k("s_add_u32 s18, s18, s19")
    k("s_and_b32 s19, s16, 3")
    k("s_lshl_b32 s19, s19, 2")
    k("s_lshr_b32 s20, s17, 3")
    k("s_add_u32 s19, s19, s20")
    k("s_and_b32 s21, s3, 3")
    k("s_lshr_b32 s22, s3, 2")
    k("s_lshl_b32 s24, s22, 7")
    k("s_lshl_b32 s25, s18, 3")
    k("s_add_u32 s24, s24, s25")
    k("s_lshl_b32 s25, s21, 1")
    k("s_add_u32 s24, s24, s25")
    k("s_lshl_b32 s24, s24, 10")
    if WS_XN:
        k(f"s_add_u32 s24, s24, {WS_XN}")
    k(f"s_mul_i32 s25, s3, {8*6144}")
    k("s_lshl_b32 s26, s19, 7")
    k("s_add_u32 s25, s25, s26")
    k("s_lshl_b32 s26, s3, 11")
    k("s_mul_i32 s27, s3, 3072")
    k("s_add_u32 s27, s27, 16384")
    VL = 1
    VA = 2
    k(f"v_lshlrev_b32 v{VL}, 4, v0")
    k("v_lshrrev_b32 v5, 3, v0")
    k("s_movk_i32 s28, 6144")
    k("v_mul_lo_u32 v6, v5, s28")
    k("v_bfe_u32 v7, v0, 4, 1")
    k("s_and_b32 s29, s3, 1")
    k("s_lshl_b32 s29, s29, 1")
    k("v_or_b32 v7, s29, v7")
    k("v_bfe_u32 v8, v0, 1, 2")
    k("v_xor_b32 v7, v7, v8")
    k("v_lshlrev_b32 v7, 5, v7")
    k("v_and_b32 v8, 1, v0")
    k("v_lshl_add_u32 v7, v8, 4, v7")
    k("v_add_u32 v6, v6, v7")
    for sub in range(3):
        k(f"v_add_u32 v{VA+sub}, {1024*sub}, v6")
    VB = 5
    VT = VB + R
    k("s_lshl_b32 s29, s21, 11")
    k(f"v_add_u32 v{VB}, s29, v{VL}")
    for sl in range(1, R):
        k(f"v_add_u32 v{VB+sl}, {sl*SLOT1}, v{VB}")
    t0, t1, t2 = 30, 31, 32
    k(f"v_lshrrev_b32 v{t0}, 4, v0")
    k(f"v_mul_u32_u24 v{t1}, 3072, v{t0}")
    k(f"v_bfe_u32 v{t2}, v0, 2, 2")
    k(f"v_lshl_add_u32 v{t1}, v{t2}, 7, v{t1}")
    k(f"v_and_b32 v33, 3, v0")
    k(f"v_lshl_add_u32 v{t1}, v33, 3, v{t1}")
    k(f"v_lshrrev_b32 v{t2}, 1, v{t2}")
    k(f"v_and_b32 v{t0}, 1, v{t0}")
    k(f"v_lshl_add_u32 v{t2}, v{t0}, 1, v{t2}")
    k("s_lshl_b32 s29, s22, 1")
    for i in range(2):
        k(f"v_xor_b32 v33, s29, v{t2}")
        if i:
            k("v_xor_b32 v33, 1, v33")
        k(f"v_lshl_add_u32 v{VT+i}, v33, 5, v{t1}")
        k(f"v_add_u32 v{VT+i}, 16384, v{VT+i}")
        for sl in range(1, R):
            k(f"v_add_u32 v{VT+2*sl+i}, {sl*SLOT1}, v{VT+i}")
    ACC = 32
    FA = ACC + 48
    FB = FA + 48
    NV = FB + 16
    assert VT + 2 * R <= 30

    def acc(t, mt):
        return ACC + (t * 2 + mt) * 4

    def reads(slot, ks, buf, st):
        out = []
        for mt in range(2):
            r = FB + buf * 8 + mt * 4
            out.append(T(f"ds_read_b128 v[{r}:{r+3}], v{VB+slot} offset:{ks*8192 + mt*1024}", use=(("B", slot), st)))
        for t in range(6):
            sub, i = t >> 1, t & 1
            for h in range(2):
                r = FA + buf * 24 + t * 4 + 2 * h
                out.append(T(f"ds_read_b64_tr_b16 v[{r}:{r+1}], v{VT+2*slot+i} offset:{ks*12288 + sub*1024 + h*512}",
                             use=(("A", slot), st)))
        return out

    def mfmas(buf):
        out = []
        for t in range(6):
            for mt in range(2):
                a = FA + buf * 24 + t * 4
                b = FB + buf * 8 + mt * 4
                c = acc(t, mt)
                if t < 4:
                    out.append(T(f"v_mfma_f32_16x16x32_bf16 v[{c}:{c+3}], v[{a}:{a+3}], v[{b}:{b+3}], v[{c}:{c+3}]"))
                else:
                    out.append(T(f"v_mfma_f32_16x16x32_bf16 v[{c}:{c+3}], v[{b}:{b+3}], v[{a}:{a+3}], v[{c}:{c+3}]"))
        return out

    def dma(slot, st):
        g1 = [T(f"s_add_u32 m0, s26, {slot*SLOT1}")]
        for i in range(2):
            g1.append(T(f"buffer_load_dwordx4 v{VL}, s[8:11], s24 offen offset:{1024*i} lds", fill=(("B", slot), st)))
        g1.append(T(f"s_add_u32 s24, s24, {2*128*1024}", bump=True))
        g2 = [T(f"s_add_u32 m0, s27, {slot*SLOT1}")]
        for sub in range(3):
            g2.append(T(f"buffer_load_dwordx4 v{VA+sub}, s[4:7], s25 offen offset:{1024*sub} lds", fill=(("A", slot), st)))
        g2.append(T(f"s_add_u32 s25, s25, {64*6144}", bump=True))
        return [g1, g2]

    L = Loop("k1", 16, 2, R, 5, reads, mfmas, dma, 30,
             rpos=lambda i, nr, nm: (i * nm) // (nr + 2),
             dpos=lambda i, nd, nm: 2 + 2 * i)
    L.prologue_dma(k)
    for i in range(48):
        k(f"v_mov_b32 v{ACC+i}, 0")
    L.prologue_sync(k)
    L.emit(k, unrolled=unrolled)
    k("s_lshl_b32 s31, s19, 1")
    k("s_add_u32 s31, s31, s22")
    k("s_lshl_b32 s32, s18, 3")
    k("s_lshl_b32 s33, s21, 1")
    k("s_add_u32 s32, s32, s33")
    k("s_lshl_b32 s33, s31, 7")
    k("s_add_u32 s33, s33, s32")
    k("s_lshl_b32 s33, s33, 10")
    k(f"s_add_u32 s33, s33, {WS_Q}")
    k("s_lshl_b32 s34, s31, 6")
    k("s_lshr_b32 s35, s32, 1")
    k("s_add_u32 s34, s34, s35")
    k("s_lshl_b32 s34, s34, 12")
    k(f"s_add_u32 s34, s34, {WS_KV}")
    qs = (32 ** -0.5) * math.log2(math.e)
    k(f"s_mov_b32 s36, {f2h(qs)}")
    O = FA
    for mt in range(2):
        for t in range(2):
            c = acc(t, mt)
            for r in range(4):
                k(f"v_mul_f32 v{c+r}, s36, v{c+r}")
        for t in range(2):
            c = acc(t, mt)
            k(f"v_cvt_pk_bf16_f32 v{O+4*mt+2*t}, v{c}, v{c+1}")
            k(f"v_cvt_pk_bf16_f32 v{O+4*mt+2*t+1}, v{c+2}, v{c+3}")
        k(f"buffer_store_dwordx4 v[{O+4*mt}:{O+4*mt+3}], v{VL}, s[8:11], s33 offen offset:{1024*mt}")
    O2 = O + 8
    for mt in range(2):
        for t in range(2):
            c = acc(2 + t, mt)
            k(f"v_cvt_pk_bf16_f32 v{O2+4*mt+2*t}, v{c}, v{c+1}")
            k(f"v_cvt_pk_bf16_f32 v{O2+4*mt+2*t+1}, v{c+2}, v{c+3}")
        k(f"buffer_store_dwordx4 v[{O2+4*mt}:{O2+4*mt+3}], v{VL}, s[8:11], s34 offen offset:{1024*mt}")
    O3 = O2 + 8
    for t in range(2):
        for mt in range(2):
            c = acc(4 + t, mt)
            k(f"v_cvt_pk_bf16_f32 v{O3+4*t+2*mt}, v{c}, v{c+1}")
            k(f"v_cvt_pk_bf16_f32 v{O3+4*t+2*mt+1}, v{c+2}, v{c+3}")
        k(f"buffer_store_dwordx4 v[{O3+4*t}:{O3+4*t+3}], v{VL}, s[8:11], s34 offen offset:{2048+1024*t}")
    k("K1_END:")
    stamp_end(k, 1)
    k("s_endpgm")
    if check:
        check_trace(k.ins, "K1")
        return None
    k.fix_hazards()
    return dict(name="qkv_kernel", grid=256, block=512, lds=R * SLOT1, kern=k, vgpr=NV, sgpr=96)
```

```python
from common import *
from gemm import T
from k_prep import wave_lane

R2 = 4
LDS2 = 98304
FLAG = 65536

ORDER = ("W M1 e0 e1 SYNC rK0 e2 e3 W M5 e4 e5 rV1 c0 c1 e6 W M2 e7 e8 rK1 c2 c3 e9 "
         "M6 e10 e11 W M3 e12 e13 rV0 e14 e15 M4 c4 c5 c6 c7").split()


def kernel_K2(unrolled=False, check=False, order=ORDER, extra_setup=None):
    k = Kern("attn_kernel")
    stamp_begin(k)
    k("s_cmp_ge_u32 s2, 256")
    k("s_cbranch_scc1 K2_END")
    wave_lane(k)
    load_srds(k, [(8, KA_WS, WS_SIZE)])
    k("s_and_b32 s16, s2, 7")
    k("s_lshr_b32 s17, s2, 3")
    k("s_lshl_b32 s18, s16, 2")
    k("s_and_b32 s19, s17, 3")
    k("s_add_u32 s18, s18, s19")
    k("s_lshr_b32 s19, s17, 2")
    k("s_lshl_b32 s20, s18, 7")
    k("s_lshl_b32 s21, s19, 4")
    k("s_add_u32 s20, s20, s21")
    k("s_lshl_b32 s21, s3, 1")
    k("s_add_u32 s20, s20, s21")
    k("s_lshl_b32 s20, s20, 10")
    k(f"s_add_u32 s21, s20, {WS_Q}")
    k(f"s_add_u32 s22, s20, {WS_O}")
    k("s_lshl_b32 s23, s18, 18")
    k(f"s_add_u32 s23, s23, {WS_KV}")
    k("s_lshl_b32 s24, s3, 11")
    k("s_add_u32 s27, s23, s24")
    k("s_mov_b32 s28, 0")
    VL, VQ, VK = 1, 2, 3
    k(f"v_lshlrev_b32 v{VL}, 4, v0")
    k("v_bfe_u32 v4, v0, 4, 1")
    k("v_lshlrev_b32 v4, 10, v4")
    k("v_lshrrev_b32 v5, 5, v0")
    k("v_lshl_add_u32 v4, v5, 8, v4")
    k("v_and_b32 v6, 15, v0")
    k(f"v_lshl_add_u32 v{VQ}, v6, 4, v4")
    k("v_bfe_u32 v4, v0, 3, 1")
    k("v_lshlrev_b32 v4, 10, v4")
    k("v_lshl_add_u32 v4, v5, 8, v4")
    k("v_bfe_u32 v6, v0, 4, 1")
    k("v_lshl_add_u32 v4, v6, 7, v4")
    k("v_and_b32 v6, 7, v0")
    k(f"v_lshl_add_u32 v{VK}, v6, 4, v4")
    Q, KF, VF, P, ONES, L = 8, 16, 24, 32, 40, 44
    O, C, S = 48, 64, 80
    NV = S + 32
    for p in range(2):
        k(f"buffer_load_dwordx4 v[{Q+4*p}:{Q+4*p+3}], v{VQ}, s[8:11], s21 offen offset:{512*p}")
    k("v_bfe_u32 v4, v0, 2, 1")
    k("v_bfe_u32 v5, v0, 4, 1")
    k("v_xor_b32 v4, v4, v5")
    k("v_and_b32 v5, 3, v0")
    k("v_or_b32 v4, v4, v5")
    k("v_cmp_eq_u32 vcc, 0, v4")
    k("v_mov_b32 v5, 0x3f803f80")
    for d in range(4):
        k(f"v_cndmask_b32 v{ONES+d}, 0, v5, vcc")
    for i in range(16):
        k(f"v_mov_b32 v{C+i}, 0")
    k(f"v_mov_b32 v6, {FLAG}")
    k("v_mov_b32 v7, 0")
    k("ds_write_b32 v6, v7")

    def dma(st):
        slot = st % R2
        return [T("s_add_u32 s26, s27, s25"),
                T(f"s_add_u32 m0, s24, {slot*16384}"),
                T(f"buffer_load_dwordx4 v{VL}, s[8:11], s26 offen lds", fill=(slot, st)),
                T(f"buffer_load_dwordx4 v{VL}, s[8:11], s26 offen offset:1024 lds", fill=(slot, st)),
                T("s_add_u32 s25, s25, 16384"),
                T("s_and_b32 s25, s25, 0x3ffff")]

    def rd(kind, tile, half):
        st, tl = tile >> 2, tile & 3
        slot = st % R2
        if kind == "K":
            r = KF + 4 * half
            return T(f"ds_read_b128 v[{r}:{r+3}], v{VK} offset:{slot*16384 + tl*4096 + 512*half}", use=(slot, st))
        r = VF + 4 * half
        return T(f"ds_read_b128 v[{r}:{r+3}], v{VQ} offset:{slot*16384 + tl*4096 + 2048 + 512*half}", use=(slot, st))

    def m32(d, a, b, c):
        return T(f"v_mfma_f32_32x32x16_bf16 v[{d}:{d+15}], v[{a}:{a+3}], v[{b}:{b+3}], v[{c}:{c+15}]")

    def m16(d, a, b):
        return T(f"v_mfma_f32_16x16x32_bf16 v[{d}:{d+3}], v[{a}:{a+3}], v[{b}:{b+3}], v[{d}:{d+3}]")

    def iteration(i):
        cur = S + 16 * (i & 1)
        nxt = S + 16 * ((i + 1) & 1)
        for tok in order:
            if tok == "W":
                k("s_waitcnt lgkmcnt(3)")
            elif tok == "M1":
                k.add([m32(nxt, KF, Q, C)])
            elif tok == "M2":
                k.add([m32(nxt, KF + 4, Q + 4, nxt)])
            elif tok == "M3":
                k.add([m32(O, VF, P, O)])
            elif tok == "M4":
                k.add([m16(L, ONES, P)])
            elif tok == "M5":
                k.add([m32(O, VF + 4, P + 4, O)])
            elif tok == "M6":
                k.add([m16(L, ONES, P + 4)])
            elif tok == "SYNC":
                if i % 4 == 2:
                    k(f"s_waitcnt vmcnt({(R2-3)*2})")
                    k("s_barrier")
                    k.add(dma((i >> 2) + R2 - 1))
            elif tok == "rK0":
                k.add([rd("K", i + 2, 0)])
            elif tok == "rK1":
                k.add([rd("K", i + 2, 1)])
            elif tok == "rV0":
                k.add([rd("V", i + 1, 0)])
            elif tok == "rV1":
                k.add([rd("V", i, 1)])
            elif tok[0] == "e":
                j = int(tok[1:])
                k(f"v_exp_f32 v{cur+j}, v{cur+j}")
            elif tok[0] == "c":
                j = int(tok[1:])
                k(f"v_cvt_pk_bf16_f32 v{P+j}, v{cur+2*j}, v{cur+2*j+1}")
            else:
                raise ValueError(tok)

    k("K2_RUN:")
    k("s_mov_b32 s25, 0")
    for st in range(R2 - 1):
        k.add(dma(st))
    for i in range(16):
        k(f"v_mov_b32 v{O+i}, 0")
    for i in range(4):
        k(f"v_mov_b32 v{L+i}, 0")
        k(f"v_mov_b32 v{P+4+i}, 0")
        k(f"v_mov_b32 v{VF+4+i}, 0")
    k(f"s_waitcnt vmcnt({(R2-2)*2}) lgkmcnt(0)")
    k("s_barrier")
    k.add([rd("K", 0, 0), rd("K", 0, 1)])
    k("s_waitcnt lgkmcnt(0)")
    k.add([m32(S, KF, Q, C), m32(S, KF + 4, Q + 4, S)])
    k.add([rd("K", 1, 0), rd("K", 1, 1), rd("V", 0, 0)])
    k("s_waitcnt lgkmcnt(0)")
    if unrolled:
        for i in range(64):
            iteration(i)
    else:
        k("s_mov_b32 s30, 4")
        k("K2_LOOP:")
        for i in range(16):
            iteration(i)
        k("s_sub_u32 s30, s30, 1")
        k("s_cmp_lg_u32 s30, 0")
        k("s_cbranch_scc1 K2_LOOP")
    k("s_waitcnt vmcnt(0) lgkmcnt(0)")
    k.add([m32(O, VF + 4, P + 4, O), m16(L, ONES, P + 4)])
    k(f"v_rcp_f32 v4, v{L}")
    tmp = S
    for i in range(16):
        k(f"v_mul_f32 v{tmp+i}, v{O+i}, v4")
    for i in range(8):
        k(f"v_cvt_pk_bf16_f32 v{P+i}, v{tmp+2*i}, v{tmp+2*i+1}")
    for c in range(2):
        k(f"buffer_store_dwordx4 v[{P+4*c}:{P+4*c+3}], v{VQ}, s[8:11], s22 offen offset:{512*c}")
    k("s_cmp_lg_u32 s28, 0")
    k("s_cbranch_scc1 K2_END")
    k("v_mov_b32 v5, 0")
    for i in range(16):
        k(f"v_fmac_f32 v5, 0, v{O+i}")
    k(f"v_mov_b32 v6, {f2h(2.0**-60)}")
    k(f"v_mov_b32 v7, {f2h(2.0**60)}")
    k(f"v_cmp_nle_f32 vcc, v6, v{L}")
    k(f"v_cmp_nle_f32 s[32:33], v{L}, v7")
    k("v_cmp_u_f32 s[34:35], v5, v5")
    k("s_or_b64 vcc, vcc, s[32:33]")
    k("s_or_b64 vcc, vcc, s[34:35]")
    k(f"v_mov_b32 v6, {FLAG}")
    k("s_cbranch_vccz K2_NOFLAG")
    k("v_mov_b32 v7, 1")
    k("ds_write_b32 v6, v7")
    k("K2_NOFLAG:")
    k("s_waitcnt lgkmcnt(0)")
    k("s_barrier")
    k("ds_read_b32 v7, v6")
    k("s_waitcnt lgkmcnt(0)")
    k("v_readfirstlane_b32 s31, v7")
    k("s_cmp_eq_u32 s31, 0")
    k("s_cbranch_scc1 K2_END")
    k("s_mov_b32 s28, 1")
    k("s_mov_b32 s29, s23")
    k("s_mov_b32 s30, 64")
    k("v_mov_b32 v4, 0xff800000")
    k("K2_MAXLOOP:")
    for p in range(2):
        k(f"buffer_load_dwordx4 v[{KF+4*p}:{KF+4*p+3}], v{VK}, s[8:11], s29 offen offset:{512*p}")
    k("s_add_u32 s29, s29, 4096")
    k("s_waitcnt vmcnt(0)")
    k(f"v_mfma_f32_32x32x16_bf16 v[{S}:{S+15}], v[{KF}:{KF+3}], v[{Q}:{Q+3}], 0")
    k.add([m32(S, KF + 4, Q + 4, S)])
    for i in range(8):
        k(f"v_max3_f32 v4, v4, v{S+2*i}, v{S+2*i+1}")
    k("s_sub_u32 s30, s30, 1")
    k("s_cmp_lg_u32 s30, 0")
    k("s_cbranch_scc1 K2_MAXLOOP")
    k("v_mov_b32 v5, v4")
    k("v_permlane32_swap_b32 v4, v5")
    k("v_max_f32 v4, v4, v5")
    for i in range(16):
        k(f"v_sub_f32 v{C+i}, 0, v4")
    k("s_branch K2_RUN")
    k("K2_END:")
    stamp_end(k, 2)
    k("s_endpgm")
    if check:
        idx = [i for i, x in enumerate(k.ins) if x.text.startswith("s_cmp_lg_u32 s28")][0]
        check_trace(k.ins[:idx], "K2")
        return None
    k.fix_hazards()
    return dict(name="attn_kernel", grid=256, block=512, lds=LDS2, kern=k, vgpr=NV, sgpr=96)
```

```python
from common import *
from gemm import T, Loop
from k_prep import wave_lane

SLOT = 49152
R35 = 3


def _common(name, which, R, unrolled):
    k = Kern(name)
    stamp_begin(k)
    E = f"{which}_END"
    k("s_cmp_ge_u32 s2, 256")
    k(f"s_cbranch_scc1 {E}")
    wave_lane(k)
    if which == "K3":
        load_srds(k, [(4, KA_WO, 1024 * 1024 * 2), (8, KA_WS, WS_SIZE), (12, KA_X, 2048 * 1024 * 2)])
        nst, WB = 8, WS_O
    else:
        load_srds(k, [(4, KA_WD, 3584 * 1024 * 2), (8, KA_WS, WS_SIZE), (12, KA_OUT, 2048 * 1024 * 2)])
        nst, WB = 28, WS_HH
    k("s_and_b32 s16, s2, 7")
    k("s_lshr_b32 s17, s2, 3")
    k("s_lshr_b32 s18, s16, 1")
    k("s_lshl_b32 s18, s18, 2")
    k("s_and_b32 s19, s17, 3")
    k("s_add_u32 s18, s18, s19")
    k("s_and_b32 s19, s16, 1")
    k("s_lshl_b32 s19, s19, 3")
    k("s_lshr_b32 s20, s17, 2")
    k("s_add_u32 s19, s19, s20")
    k("s_lshl_b32 s24, s3, 7")
    k("s_lshl_b32 s25, s18, 3")
    k("s_add_u32 s24, s24, s25")
    k("s_lshl_b32 s24, s24, 10")
    k(f"s_add_u32 s24, s24, {WB}")
    k("s_lshl_b32 s25, s3, 16")
    k("s_lshl_b32 s26, s19, 7")
    k("s_add_u32 s25, s25, s26")
    k("s_lshl_b32 s26, s3, 13")
    k("s_lshl_b32 s27, s3, 12")
    k("s_add_u32 s27, s27, 32768")
    VL, VA = 1, 2
    k(f"v_lshlrev_b32 v{VL}, 4, v0")
    k("v_lshrrev_b32 v6, 3, v0")
    k("v_lshlrev_b32 v6, 11, v6")
    k("v_bfe_u32 v8, v0, 1, 2")
    k("v_and_b32 v9, 1, v0")
    k("v_lshl_add_u32 v6, v9, 4, v6")
    for p in range(4):
        if which == "K3":
            k("v_bfe_u32 v7, v0, 4, 2")
        else:
            k("v_bfe_u32 v7, v0, 4, 1")
            if p & 1:
                k("v_or_b32 v7, 2, v7")
        k("v_xor_b32 v7, v7, v8")
        k("v_lshl_add_u32 v7, v7, 5, v6")
        k(f"v_add_u32 v{VA+p}, {p*(8*2048-1024)}, v7")
    VB = 6
    VT = VB + R
    k("s_lshl_b32 s29, s3, 11")
    k(f"v_add_u32 v{VB}, s29, v{VL}")
    for sl in range(1, R):
        k(f"v_add_u32 v{VB+sl}, {sl*SLOT}, v{VB}")
    t0, t1, t2, t3 = 28, 29, 30, 31
    assert VT + 4 * R <= 28
    k(f"v_lshrrev_b32 v{t0}, 4, v0")
    k(f"v_bfe_u32 v{t2}, v0, 2, 2")
    if which == "K3":
        k(f"v_lshrrev_b32 v{t1}, 1, v{t0}")
        k(f"v_lshlrev_b32 v{t1}, 11, v{t1}")
        k(f"v_and_b32 v{t3}, 1, v{t0}")
        k(f"v_lshl_add_u32 v{t1}, v{t3}, 9, v{t1}")
    else:
        k(f"v_lshlrev_b32 v{t1}, 10, v{t0}")
    k(f"v_lshl_add_u32 v{t1}, v{t2}, 7, v{t1}")
    k(f"v_and_b32 v{t3}, 3, v0")
    k(f"v_lshl_add_u32 v{t1}, v{t3}, 3, v{t1}")
    k(f"v_add_u32 v{t1}, 32768, v{t1}")
    k(f"v_lshrrev_b32 v{t2}, 1, v{t2}")
    k(f"v_and_b32 v{t0}, 1, v{t0}")
    k(f"v_lshl_add_u32 v{t2}, v{t0}, 1, v{t2}")
    for f4 in range(4):
        k(f"v_xor_b32 v{t3}, {f4}, v{t2}")
        k(f"v_lshl_add_u32 v{VT+f4}, v{t3}, 5, v{t1}")
        for sl in range(1, R):
            k(f"v_add_u32 v{VT+4*sl+f4}, {sl*SLOT}, v{VT+f4}")
    ACC = 32
    FA = ACC + 32
    FB = FA + 32
    RES = FB + 16
    NV = RES + 16
    hs = 1024 if which == "K3" else 512

    def acc(t, mt):
        return ACC + (t * 2 + mt) * 4

    def reads(slot, ks, buf, st):
        out = []
        for mt in range(2):
            r = FB + buf * 8 + mt * 4
            out.append(T(f"ds_read_b128 v[{r}:{r+3}], v{VB+slot} offset:{ks*8192 + mt*1024}", use=(("B", slot), st)))
        for t in range(4):
            for h in range(2):
                r = FA + buf * 16 + t * 4 + 2 * h
                out.append(T(f"ds_read_b64_tr_b16 v[{r}:{r+1}], v{VT+4*slot+t} offset:{ks*4096 + h*hs}",
                             use=(("A", slot), st)))
        return out

    def mfmas(buf):
        out = []
        for t in range(4):
            for mt in range(2):
                a = FA + buf * 16 + t * 4
                b = FB + buf * 8 + mt * 4
                c = acc(t, mt)
                out.append(T(f"v_mfma_f32_16x16x32_bf16 v[{c}:{c+3}], v[{a}:{a+3}], v[{b}:{b+3}], v[{c}:{c+3}]"))
        return out

    def dma(slot, st):
        gs = []
        for hb in range(2):
            g = [T(f"s_add_u32 m0, s26, {slot*SLOT + hb*4096}")]
            if hb:
                g.append(T("s_add_u32 s28, s24, 4096"))
            for i in range(4):
                g.append(T(f"buffer_load_dwordx4 v{VL}, s[8:11], s{28 if hb else 24} offen offset:{1024*i} lds",
                           fill=(("B", slot), st)))
            if hb:
                g.append(T(f"s_add_u32 s24, s24, {4*128*1024}", bump=True))
            gs.append(g)
        g = [T(f"s_add_u32 m0, s27, {slot*SLOT}")]
        for p in range(4):
            g.append(T(f"buffer_load_dwordx4 v{VA+p}, s[4:7], s25 offen offset:{1024*p} lds", fill=(("A", slot), st)))
        g.append(T(f"s_add_u32 s25, s25, {128*2048}", bump=True))
        gs.append(g)
        return gs

    L = Loop(which.lower(), nst, 4, R, 12, reads, mfmas, dma, 30,
             rpos=lambda i, nr, nm: (i * nm) // nr,
             dpos=lambda i, nd, nm: 3 + 2 * i)
    k("s_lshl_b32 s32, s18, 3")
    k("s_lshl_b32 s33, s3, 1")
    k("s_add_u32 s32, s32, s33")
    k("s_lshl_b32 s34, s32, 15")
    k("s_lshl_b32 s35, s19, 7")
    k("s_add_u32 s34, s34, s35")
    k("s_lshl_b32 s35, s19, 8")
    k("s_add_u32 s35, s35, s32")
    k("s_lshl_b32 s35, s35, 10")
    k(f"s_add_u32 s35, s35, {WS_H}")
    k("s_add_u32 s36, s35, 0x20000")
    VR = t0
    return k, L, dict(VL=VL, ACC=ACC, FA=FA, FB=FB, RES=RES, NV=NV, acc=acc, VR=VR, t1=t1, t2=t2, t3=t3, E=E, R=R)


def kernel_K3(R=R35, unrolled=False, check=False):
    k, L, c = _common("wo_kernel", "K3", R, unrolled)
    VL, ACC, FA, RES, acc, VR = c["VL"], c["ACC"], c["FA"], c["RES"], c["acc"], c["VR"]
    k(f"v_and_b32 v{VR}, 15, v0")
    k(f"v_lshlrev_b32 v{VR}, 11, v{VR}")
    k(f"v_lshrrev_b32 v{c['t1']}, 4, v0")
    k(f"v_lshl_add_u32 v{VR}, v{c['t1']}, 3, v{VR}")
    k("s_add_u32 s37, s34, 0x8000")
    for mt in range(2):
        for t in range(4):
            r = RES + (mt * 4 + t) * 2
            k(f"buffer_load_dwordx2 v[{r}:{r+1}], v{VR}, s[12:15], s{37 if mt else 34} offen offset:{32*t}")
    L.prologue_dma(k)
    for i in range(32):
        k(f"v_mov_b32 v{ACC+i}, 0")
    L.prologue_sync(k)
    L.emit(k, unrolled=unrolled)
    X = FA
    PK = FA + 16
    RB = FA + 32
    SM = [4, 5]
    M2 = [6, 7]
    for mt in range(2):
        for t in range(4):
            a = acc(t, mt)
            r = RES + (mt * 4 + t) * 2
            k(f"v_lshlrev_b32 v{X+4*t}, 16, v{r}")
            k(f"v_and_b32 v{X+4*t+1}, 0xffff0000, v{r}")
            k(f"v_lshlrev_b32 v{X+4*t+2}, 16, v{r+1}")
            k(f"v_and_b32 v{X+4*t+3}, 0xffff0000, v{r+1}")
            for q in range(4):
                k(f"v_add_f32 v{X+4*t+q}, v{X+4*t+q}, v{a+q}")
            k(f"v_cvt_pk_bf16_f32 v{PK+2*t}, v{X+4*t}, v{X+4*t+1}")
            k(f"v_cvt_pk_bf16_f32 v{PK+2*t+1}, v{X+4*t+2}, v{X+4*t+3}")
        k(f"buffer_store_dwordx4 v[{PK}:{PK+3}], v{VL}, s[8:11], s35 offen offset:{1024*mt}")
        k(f"buffer_store_dwordx4 v[{PK+4}:{PK+7}], v{VL}, s[8:11], s36 offen offset:{1024*mt}")
        for i in range(8):
            k(f"v_lshlrev_b32 v{RB+2*i}, 16, v{PK+i}")
            k(f"v_and_b32 v{RB+2*i+1}, 0xffff0000, v{PK+i}")
        for q in range(4):
            k(f"v_add_f32 v{X+q}, v{RB+q}, v{RB+4+q}")
            k(f"v_add_f32 v{X+4+q}, v{RB+8+q}, v{RB+12+q}")
        for q in range(4):
            k(f"v_add_f32 v{X+q}, v{X+q}, v{X+4+q}")
        k(f"v_add_f32 v{X}, v{X}, v{X+1}")
        k(f"v_add_f32 v{X+2}, v{X+2}, v{X+3}")
        k(f"v_add_f32 v{SM[mt]}, v{X}, v{X+2}")
        allreduce_rows(k, SM[mt], X)
        k(f"v_mul_f32 v{X}, {f2h(1.0/64)}, v{SM[mt]}")
        for i in range(16):
            k(f"v_sub_f32 v{RB+i}, v{RB+i}, v{X}")
        for q in range(4):
            k(f"v_mul_f32 v{X+4+q}, v{RB+q}, v{RB+q}")
        for i in range(4, 16):
            k(f"v_fmac_f32 v{X+4+(i&3)}, v{RB+i}, v{RB+i}")
        k(f"v_add_f32 v{X+4}, v{X+4}, v{X+5}")
        k(f"v_add_f32 v{X+6}, v{X+6}, v{X+7}")
        k(f"v_add_f32 v{M2[mt]}, v{X+4}, v{X+6}")
        allreduce_rows(k, M2[mt], X)
    k("v_bfe_u32 v8, v0, 4, 1")
    k("v_cmp_ne_u32 vcc, 0, v8")
    k(f"v_cndmask_b32 v10, v{SM[0]}, v{SM[1]}, vcc")
    k(f"v_cndmask_b32 v11, v{M2[0]}, v{M2[1]}, vcc")
    k("v_and_b32 v9, 15, v0")
    k("v_lshl_add_u32 v9, v8, 4, v9")
    k("v_lshlrev_b32 v9, 3, v9")
    k("s_lshl_b32 s38, s19, 14")
    k("s_lshl_b32 s39, s32, 7")
    k("s_add_u32 s38, s38, s39")
    k(f"s_add_u32 s38, s38, {WS_STAT}")
    k("buffer_store_dwordx2 v[10:11], v9, s[8:11], s38 offen")
    k(f"{c['E']}:")
    stamp_end(k, 3)
    k("s_endpgm")
    if check:
        check_trace(k.ins, "K3")
        return None
    k.fix_hazards()
    return dict(name="wo_kernel", grid=256, block=256, lds=R * SLOT, kern=k, vgpr=c["NV"], sgpr=96)


def kernel_K5(R=R35, unrolled=False, check=False):
    k, L, c = _common("down_kernel", "K5", R, unrolled)
    VL, ACC, FA, RES, acc, VR = c["VL"], c["ACC"], c["FA"], c["RES"], c["acc"], c["VR"]
    for mt in range(2):
        for sb in range(2):
            r = RES + (mt * 2 + sb) * 4
            k(f"buffer_load_dwordx4 v[{r}:{r+3}], v{VL}, s[8:11], s{36 if sb else 35} offen offset:{1024*mt}")
    k(f"v_and_b32 v{VR}, 15, v0")
    k(f"v_lshlrev_b32 v{VR}, 11, v{VR}")
    k(f"v_bfe_u32 v{c['t1']}, v0, 4, 1")
    k(f"v_lshl_add_u32 v{VR}, v{c['t1']}, 5, v{VR}")
    k(f"v_bfe_u32 v{c['t1']}, v0, 5, 1")
    k(f"v_lshl_add_u32 v{VR}, v{c['t1']}, 4, v{VR}")
    k("s_add_u32 s37, s34, 0x8000")
    L.prologue_dma(k)
    for i in range(32):
        k(f"v_mov_b32 v{ACC+i}, 0")
    L.prologue_sync(k)
    L.emit(k, unrolled=unrolled)
    X = FA
    PK = FA + 16
    for mt in range(2):
        for sb in range(2):
            r = RES + (mt * 2 + sb) * 4
            o = PK + (mt * 2 + sb) * 4
            for tt in range(2):
                t = 2 * sb + tt
                a = acc(t, mt)
                x = X + 4 * tt
                k(f"v_lshlrev_b32 v{x}, 16, v{r+2*tt}")
                k(f"v_and_b32 v{x+1}, 0xffff0000, v{r+2*tt}")
                k(f"v_lshlrev_b32 v{x+2}, 16, v{r+2*tt+1}")
                k(f"v_and_b32 v{x+3}, 0xffff0000, v{r+2*tt+1}")
                for q in range(4):
                    k(f"v_add_f32 v{x+q}, v{x+q}, v{a+q}")
            k(f"v_cvt_pk_bf16_f32 v{o}, v{X}, v{X+1}")
            k(f"v_cvt_pk_bf16_f32 v{o+1}, v{X+2}, v{X+3}")
            k(f"v_cvt_pk_bf16_f32 v{o+2}, v{X+4}, v{X+5}")
            k(f"v_cvt_pk_bf16_f32 v{o+3}, v{X+6}, v{X+7}")
            k(f"v_permlane16_swap_b32 v{o}, v{o+2}")
            k(f"v_permlane16_swap_b32 v{o+1}, v{o+3}")
            k(f"buffer_store_dwordx4 v[{o}:{o+3}], v{VR}, s[12:15], s{37 if mt else 34} offen offset:{64*sb}")
    k(f"{c['E']}:")
    stamp_end(k, 5)
    k("s_endpgm")
    if check:
        check_trace(k.ins, "K5")
        return None
    k.fix_hazards()
    return dict(name="down_kernel", grid=256, block=256, lds=R * SLOT, kern=k, vgpr=c["NV"], sgpr=96)
```

```python
from common import *
from gemm import T, Loop
from k_prep import wave_lane
import math

SLOT4 = 30720
R4 = 4
CSL = R4 * SLOT4
LDS4 = CSL + 2048


def kernel_K4(unrolled=False, check=False):
    R = R4
    k = Kern("gu_kernel")
    stamp_begin(k)
    k("s_cmp_ge_u32 s2, 256")
    k("s_cbranch_scc1 K4_END")
    k("v_lshlrev_b32 v14, 2, v0")
    wave_lane(k)
    load_srds(k, [(8, KA_WS, WS_SIZE)])
    k("s_and_b32 s16, s2, 7")
    k("s_lshr_b32 s17, s2, 3")
    k("s_and_b32 s18, s16, 1")
    k("s_lshl_b32 s18, s18, 2")
    k("s_and_b32 s19, s17, 3")
    k("s_add_u32 s18, s18, s19")
    k("s_lshr_b32 s19, s16, 1")
    k("s_lshl_b32 s19, s19, 3")
    k("s_lshr_b32 s20, s17, 2")
    k("s_add_u32 s19, s19, s20")
    ACC, FA, FB = 16, 128, 240
    VL, VL2, VB0, VB1 = 1, 2, 3, 4
    P1 = [6, 10]
    P2 = [8, 12]
    k("v_lshrrev_b32 v5, 4, v0")
    k("v_lshlrev_b32 v5, 16, v5")
    k("v_and_b32 v15, 15, v0")
    k("v_lshl_add_u32 v5, v15, 3, v5")
    k("s_lshl_b32 s21, s18, 11")
    k("s_lshl_b32 s22, s3, 8")
    k("s_add_u32 s21, s21, s22")
    k(f"s_add_u32 s21, s21, {WS_STAT}")
    ST = FA
    for i in range(4):
        for mt in range(2):
            r = ST + (mt * 4 + i) * 2
            k(f"buffer_load_dwordx2 v[{r}:{r+1}], v5, s[8:11], s21 offen offset:{128*mt}")
        if i < 3:
            k("s_add_u32 s21, s21, 16384")
    CSR = FA + 16
    k(f"s_mul_i32 s22, s19, {14*64}")
    k(f"s_add_u32 s22, s22, {WS_CS}")
    for kp in range(4):
        k(f"buffer_load_dword v{CSR+kp}, v14, s[8:11], s22 offen")
        if kp < 3:
            k(f"s_add_u32 s22, s22, {448*64}")
    k("s_lshl_b32 s24, s18, 4")
    k("s_lshl_b32 s25, s3, 2")
    k("s_add_u32 s24, s24, s25")
    k("s_lshl_b32 s24, s24, 10")
    k(f"s_add_u32 s24, s24, {WS_H}")
    k("s_lshl_b32 s26, s3, 12")
    k("s_sub_u32 s27, s25, 16")
    k("s_min_u32 s27, s27, 10")
    k("s_mul_i32 s28, s19, 448")
    k("s_add_u32 s28, s28, s27")
    k("s_lshl_b32 s28, s28, 10")
    k(f"s_add_u32 s28, s28, {WS_WGU}")
    k("s_lshl_b32 s27, s27, 10")
    k("s_add_u32 s27, s27, 16384")
    k(f"s_movk_i32 s31, {14*1024}")
    k("s_cmp_lt_u32 s3, 4")
    k("s_cselect_b32 s24, s24, s28")
    k("s_cselect_b32 s26, s26, s27")
    k(f"s_cselect_b32 s25, {128*1024}, s31")
    k(f"v_lshlrev_b32 v{VL}, 4, v0")
    k(f"v_add_u32 v{VL2}, {2*SLOT4}, v{VL}")
    k("s_lshl_b32 s29, s3, 11")
    k(f"v_add_u32 v{VB0}, s29, v{VL}")
    k(f"v_add_u32 v{VB1}, {2*SLOT4}, v{VB0}")

    def acc(q, mt):
        return ACC + (q * 2 + mt) * 4

    def reads(slot, ks, buf, st):
        out = []
        so = (slot & 1) * SLOT4
        vb = VB1 if slot >= 2 else VB0
        va = VL2 if slot >= 2 else VL
        for mt in range(2):
            r = FB + buf * 8 + mt * 4
            out.append(T(f"ds_read_b128 v[{r}:{r+3}], v{vb} offset:{so + mt*1024}", use=(slot, st)))
        for q in range(14):
            r = FA + buf * 56 + q * 4
            out.append(T(f"ds_read_b128 v[{r}:{r+3}], v{va} offset:{so + 16384 + q*1024}", use=(slot, st)))
        return out

    def mfmas(buf):
        out = []
        for q in range(14):
            for mt in range(2):
                a = FA + buf * 56 + q * 4
                b = FB + buf * 8 + mt * 4
                c = acc(q, mt)
                out.append(T(f"v_mfma_f32_16x16x32_bf16 v[{c}:{c+3}], v[{a}:{a+3}], v[{b}:{b+3}], v[{c}:{c+3}]"))
        return out

    def dma(slot, st):
        g = [T(f"s_add_u32 m0, s26, {slot*SLOT4}")]
        for i in range(4):
            g.append(T(f"buffer_load_dwordx4 v{VL}, s[8:11], s24 offen offset:{1024*i} lds", fill=(slot, st)))
        g.append(T("s_add_u32 s24, s24, s25", bump=True))
        return [g]

    L = Loop("k4", 32, 1, R, 4, reads, mfmas, dma, 30,
             rpos=lambda i, nr, nm: i,
             dpos=lambda i, nd, nm: 18 + 2 * i)
    L.prologue_dma(k)
    k(f"s_waitcnt vmcnt({4*(R-1) + 4})")
    kap = 2.0 * math.sqrt(2.0 / math.pi) * math.log2(math.e)
    TM = FA + 24
    for mt in range(2):
        r = ST + mt * 8
        k(f"v_add_f32 v{TM}, v{r}, v{r+2}")
        k(f"v_add_f32 v{TM+1}, v{r+4}, v{r+6}")
        k(f"v_add_f32 v{TM}, v{TM}, v{TM+1}")
        allreduce_rows(k, TM, TM + 1)
        k(f"v_mul_f32 v{TM}, {f2h(1.0/1024)}, v{TM}")
        k(f"v_add_f32 v{TM+2}, v{r+1}, v{r+3}")
        k(f"v_add_f32 v{TM+3}, v{r+5}, v{r+7}")
        k(f"v_add_f32 v{TM+2}, v{TM+2}, v{TM+3}")
        for i in range(4):
            k(f"v_mul_f32 v{TM+4+i}, {f2h(1.0/64)}, v{r+2*i}")
            k(f"v_sub_f32 v{TM+4+i}, v{TM+4+i}, v{TM}")
        k(f"v_mul_f32 v{TM+3}, v{TM+4}, v{TM+4}")
        for i in range(1, 4):
            k(f"v_fmac_f32 v{TM+3}, v{TM+4+i}, v{TM+4+i}")
        k(f"v_fmac_f32 v{TM+2}, {f2h(64.0)}, v{TM+3}")
        allreduce_rows(k, TM + 2, TM + 1)
        k(f"v_mov_b32 v{P2[mt]+1}, {f2h(1e-5)}")
        k(f"v_fmac_f32 v{P2[mt]+1}, {f2h(1.0/1024)}, v{TM+2}")
        k(f"v_rsq_f32 v{TM+3}, v{P2[mt]+1}")
        k(f"v_sub_f32 v{P1[mt]}, 0, v{TM}")
        k(f"v_mul_f32 v{P1[mt]+1}, {f2h(-kap)}, v{TM+3}")
        k(f"v_mul_f32 v{TM+4}, v{TM+3}, v{TM+3}")
        k(f"v_mul_f32 v{TM+4}, v{TM+4}, v{P1[mt]+1}")
        k(f"v_mul_f32 v{P2[mt]}, {f2h(0.044715)}, v{TM+4}")
    k(f"s_waitcnt vmcnt({4*(R-1)})")
    k(f"v_add_f32 v{CSR}, v{CSR}, v{CSR+1}")
    k(f"v_add_f32 v{CSR+2}, v{CSR+2}, v{CSR+3}")
    k(f"v_add_f32 v{CSR}, v{CSR}, v{CSR+2}")
    k(f"v_add_u32 v14, {CSL}, v14")
    k(f"ds_write_b32 v14, v{CSR}")
    for i in range(112):
        k(f"v_mov_b32 v{ACC+i}, 0")
    k("s_waitcnt lgkmcnt(0)")
    L.prologue_sync(k)
    L.emit(k, unrolled=unrolled)
    CS = FA
    k("v_lshrrev_b32 v14, 4, v0")
    k("v_lshlrev_b32 v14, 4, v14")
    k(f"v_add_u32 v14, {CSL}, v14")
    for q in range(14):
        k(f"ds_read_b128 v[{CS+4*q}:{CS+4*q+3}], v14 offset:{64*q}")
    k("s_lshr_b32 s32, s19, 1")
    k("s_mul_i32 s32, s32, 7")
    k("s_and_b32 s33, s19, 1")
    k("s_lshl_b32 s34, s33, 2")
    k("s_add_u32 s34, s34, s32")
    k("s_add_u32 s32, s32, 3")
    k("s_lshl_b32 s35, s18, 4")
    k("s_lshl_b32 s36, s3, 1")
    k("s_add_u32 s35, s35, s36")
    k("s_lshl_b32 s34, s34, 7")
    k("s_add_u32 s34, s34, s35")
    k("s_lshl_b32 s34, s34, 10")
    k(f"s_add_u32 s34, s34, {WS_HH}")
    k("s_lshl_b32 s32, s32, 7")
    k("s_add_u32 s32, s32, s35")
    k("s_lshl_b32 s32, s32, 10")
    k("s_lshl_b32 s33, s33, 3")
    k("s_add_u32 s32, s32, s33")
    k(f"s_add_u32 s32, s32, {WS_HH}")
    OUT = [FA + 56, FA + 72]
    TMP = FA + 88
    BC_LO = "op_sel_hi:[1,0,1]"

    def pr(r):
        return f"v[{r}:{r+1}]"

    def stream(q, mt, tb):
        a = acc(q, mt)
        c = CS + 4 * q
        Tg, Tu, X = tb, tb + 2, tb + 4
        p1, p2 = P1[mt], P2[mt]
        return [
            f"v_pk_fma_f32 {pr(Tg)}, {pr(c)}, {pr(p1)}, {pr(a)} op_sel_hi:[1,0,1]",
            f"v_pk_fma_f32 {pr(Tu)}, {pr(c+2)}, {pr(p1)}, {pr(a+2)} op_sel_hi:[1,0,1]",
            f"v_pk_mul_f32 {pr(X)}, {pr(Tg)}, {pr(Tg)}",
            f"v_pk_fma_f32 {pr(X)}, {pr(X)}, {pr(p2)}, {pr(p1)} op_sel:[0,0,1] op_sel_hi:[1,0,1]",
            f"v_pk_mul_f32 {pr(X)}, {pr(X)}, {pr(Tg)}",
            f"v_exp_f32 v{X}, v{X}",
            f"v_exp_f32 v{X+1}, v{X+1}",
            f"v_pk_mul_f32 {pr(Tg)}, {pr(Tg)}, {pr(Tu)}",
            f"v_pk_fma_f32 {pr(X)}, {pr(X)}, {pr(p2)}, {pr(p2)} op_sel:[0,1,1] op_sel_hi:[1,1,1]",
            f"v_rcp_f32 v{X}, v{X}",
            f"v_rcp_f32 v{X+1}, v{X+1}",
            None,
            f"v_pk_mul_f32 {pr(Tg)}, {pr(Tg)}, {pr(X)}",
            f"v_cvt_pk_bf16_f32 v{OUT[mt]+q}, v{Tg}, v{Tg+1}",
        ]

    k("s_waitcnt lgkmcnt(0)")
    for q0 in range(0, 14, 2):
        strs = [stream(q0 + dq, mt, TMP + 6 * (2 * dq + mt)) for dq in range(2) for mt in range(2)]
        for i in range(len(strs[0])):
            for sx in strs:
                if sx[i]:
                    k(sx[i])
        done = q0 + 2
        if done in (4, 8, 12):
            b = done // 4 - 1
            for mt in range(2):
                o = OUT[mt] + 4 * b
                k(f"buffer_store_dwordx4 v[{o}:{o+3}], v{VL}, s[8:11], s34 offen offset:{1024*mt}")
            if done < 12:
                k("s_add_u32 s34, s34, 0x20000")
        if done == 14:
            for mt in range(2):
                o = OUT[mt] + 12
                k(f"buffer_store_dwordx2 v[{o}:{o+1}], v{VL}, s[8:11], s32 offen offset:{1024*mt}")
    k("K4_END:")
    stamp_end(k, 4)
    k("s_endpgm")
    if check:
        check_trace(k.ins, "K4")
        return None
    k.fix_hazards()
    return dict(name="gu_kernel", grid=256, block=512, lds=LDS4, kern=k, vgpr=256, sgpr=96)
```

```python
from common import *
from gemm import T

P_GRID = 128 + 224


def wave_lane(k, swave=3):
    k("v_lshrrev_b32 v1, 6, v0")
    k("v_and_b32 v0, 63, v0")
    k(f"v_readfirstlane_b32 s{swave}, v1")


def emit_ln(k):
    k("v_and_b32 v1, 15, v0")
    k("v_lshrrev_b32 v2, 4, v0")
    k("s_lshl_b32 s16, s2, 15")
    k("s_lshl_b32 s17, s3, 9")
    k("s_add_u32 s16, s16, s17")
    k("v_lshlrev_b32 v3, 11, v1")
    k("v_lshl_add_u32 v3, v2, 4, v3")
    for i in range(8):
        k(f"buffer_load_dwordx4 v[{8+4*i}:{11+4*i}], v3, s[4:7], s16 offen offset:{64*i}")
    k("v_lshlrev_b32 v4, 4, v0")
    k("s_lshl_b32 s18, s3, 20")
    k("s_lshl_b32 s19, s2, 10")
    k("s_add_u32 s18, s18, s19")
    k(f"s_add_u32 s18, s18, {WS_XN}")
    k("v_lshlrev_b32 v5, 4, v1")
    k("s_lshl_b32 s20, s3, 2")
    k("v_add_u32 v6, s20, v5")
    F = 40
    for i in range(8):
        k(f"s_waitcnt vmcnt({7-i})")
        for d in range(4):
            r = 8 + 4 * i + d
            k(f"v_lshlrev_b32 v{F+8*i+2*d}, 16, v{r}")
            k(f"v_and_b32 v{F+8*i+2*d+1}, 0xffff0000, v{r}")
    for c in range(4):
        k(f"v_add_f32 v{8+c}, v{F+c}, v{F+4+c}")
    for i in range(2, 16):
        for c in range(4):
            k(f"v_add_f32 v{8+c}, v{8+c}, v{F+4*i+c}")
    k("v_add_f32 v8, v8, v9")
    k("v_add_f32 v10, v10, v11")
    k("v_add_f32 v8, v8, v10")
    allreduce_rows(k, 8, 9)
    k("ds_write_b32 v6, v8")
    k("s_waitcnt lgkmcnt(0)")
    k("s_barrier")
    k("ds_read_b128 v[12:15], v5")
    k("s_waitcnt lgkmcnt(0)")
    k("v_add_f32 v12, v12, v13")
    k("v_add_f32 v14, v14, v15")
    k("v_add_f32 v12, v12, v14")
    k(f"v_mul_f32 v12, {f2h(1.0/1024)}, v12")
    for i in range(64):
        k(f"v_sub_f32 v{F+i}, v{F+i}, v12")
    for c in range(4):
        k(f"v_mul_f32 v{8+c}, v{F+c}, v{F+c}")
    for i in range(1, 16):
        for c in range(4):
            k(f"v_fmac_f32 v{8+c}, v{F+4*i+c}, v{F+4*i+c}")
    k("v_add_f32 v8, v8, v9")
    k("v_add_f32 v10, v10, v11")
    k("v_add_f32 v8, v8, v10")
    allreduce_rows(k, 8, 9)
    k("ds_write_b32 v6, v8 offset:256")
    k("s_waitcnt lgkmcnt(0)")
    k("s_barrier")
    k("ds_read_b128 v[12:15], v5 offset:256")
    k("s_waitcnt lgkmcnt(0)")
    k("v_add_f32 v12, v12, v13")
    k("v_add_f32 v14, v14, v15")
    k("v_add_f32 v12, v12, v14")
    k(f"v_mov_b32 v13, {f2h(1e-5)}")
    k(f"v_fmac_f32 v13, {f2h(1.0/1024)}, v12")
    k("v_rsq_f32 v7, v13")
    for i in range(8):
        for d in range(4):
            k(f"v_mul_f32 v{F+8*i+2*d}, v{F+8*i+2*d}, v7")
            k(f"v_mul_f32 v{F+8*i+2*d+1}, v{F+8*i+2*d+1}, v7")
            k(f"v_cvt_pk_bf16_f32 v{8+4*i+d}, v{F+8*i+2*d}, v{F+8*i+2*d+1}")
        k(f"buffer_store_dwordx4 v[{8+4*i}:{11+4*i}], v4, s[8:11], s18 offen")
        if i < 7:
            k(f"s_add_u32 s18, s18, {128*1024}")


def emit_pack(k, wgreg):
    k(f"s_lshr_b32 s24, s{wgreg}, 2")
    k(f"s_and_b32 s25, s{wgreg}, 3")
    k("s_lshl_b32 s26, s25, 3")
    k("s_lshl_b32 s27, s3, 1")
    k("s_add_u32 s26, s26, s27")
    k("v_lshrrev_b32 v1, 3, v0")
    k("v_and_b32 v2, 7, v0")
    k("s_movk_i32 s28, 7168")
    k("v_mul_lo_u32 v1, v1, s28")
    k("v_lshl_add_u32 v1, v2, 4, v1")
    for p in range(4):
        k(f"v_add_u32 v{2+p}, {p*(8*7168-1024)}, v1")
    k(f"s_mul_i32 s29, s26, {32*7168}")
    k("s_lshl_b32 s30, s24, 7")
    k("s_add_u32 s29, s29, s30")
    k("s_lshl_b32 s31, s3, 14")
    for sl in range(2):
        for gu in range(2):
            k(f"s_add_u32 m0, s31, {sl*8192+gu*4096}")
            srd = 12 if gu == 0 else 20
            for p in range(4):
                k(f"buffer_load_dwordx4 v{2+p}, s[{srd}:{srd+3}], s29 offen offset:{1024*p} lds")
        if sl == 0:
            k(f"s_add_u32 s29, s29, {32*7168}")
    for b5 in range(2):
        A, B = 32 + 2 * b5, 33 + 2 * b5
        k("s_lshl_b32 s36, s24, 1")
        if b5:
            k("s_add_u32 s36, s36, 1")
        k("s_mul_i32 s37, s36, 9363")
        k("s_lshr_b32 s37, s37, 16")
        k("s_mul_i32 s38, s37, 7")
        k("s_sub_u32 s38, s36, s38")
        k("s_lshl_b32 s39, s37, 1")
        k("s_cmp_ge_u32 s38, 4")
        k("s_cselect_b32 s40, 1, 0")
        k("s_add_u32 s40, s39, s40")
        k("s_cmp_ge_u32 s38, 4")
        k("s_cselect_b32 s41, 4, 0")
        k("s_sub_u32 s41, s38, s41")
        k("s_lshl_b32 s41, s41, 2")
        k("s_add_u32 s42, s41, 2")
        k("s_mov_b32 s43, s40")
        k("s_cmp_eq_u32 s38, 3")
        k("s_cselect_b32 s42, 12, s42")
        k("s_add_u32 s44, s39, 1")
        k("s_cmp_eq_u32 s38, 3")
        k("s_cselect_b32 s43, s44, s43")
        k("s_mul_i32 s44, s40, 14")
        k("s_add_u32 s44, s44, s41")
        k(f"s_mov_b32 s{46+2*b5}, s44")
        k("s_mul_i32 s44, s43, 14")
        k("s_add_u32 s44, s44, s42")
        k(f"s_mov_b32 s{47+2*b5}, s44")
        k("s_mul_i32 s44, s40, 448")
        k("s_add_u32 s44, s44, s41")
        k(f"s_mov_b32 s{A}, s44")
        k("s_mul_i32 s44, s43, 448")
        k("s_add_u32 s44, s44, s42")
        k(f"s_mov_b32 s{B}, s44")
    k("s_mul_i32 s44, s26, 14")
    for r in (32, 33, 34, 35):
        k(f"s_add_u32 s{r}, s{r}, s44")
        k(f"s_lshl_b32 s{r}, s{r}, 10")
        k(f"s_add_u32 s{r}, s{r}, {WS_WGU}")
    k("v_lshrrev_b32 v6, 4, v0")
    k("v_bfe_u32 v7, v0, 2, 2")
    k("v_lshl_add_u32 v6, v6, 2, v7")
    k("v_lshlrev_b32 v6, 7, v6")
    k("v_and_b32 v7, 3, v0")
    k("v_lshl_add_u32 v6, v7, 4, v6")
    k("v_add_u32 v6, s31, v6")
    k("v_lshlrev_b32 v7, 4, v0")
    for d in range(4):
        k(f"v_mov_b32 v{8+d}, 0x3f803f80")
    k("v_and_b32 v12, 2, v0")
    k("v_cmp_eq_u32 s[52:53], 0, v12")
    k("v_cmp_ne_u32 s[54:55], 0, v12")
    CSUM = 64
    for i in range(32):
        k(f"v_mov_b32 v{CSUM+i}, 0")
    G, U, O = 16, 24, 32
    k("s_waitcnt vmcnt(0)")
    for sl in range(2):
        for b5 in range(2):
            for eh in range(2):
                off = sl * 8192 + 64 * b5 + 8 * eh
                for h in range(2):
                    k(f"ds_read_b64_tr_b16 v[{G+2*h}:{G+2*h+1}], v6 offset:{off + h*2048}")
                for h in range(2):
                    k(f"ds_read_b64_tr_b16 v[{U+2*h}:{U+2*h+1}], v6 offset:{off + 4096 + h*2048}")
                k("s_waitcnt lgkmcnt(0)")
                k("s_mov_b64 vcc, s[52:53]")
                for d in range(4):
                    k(f"v_cndmask_b32_dpp v{O+d}, v{U+d}, v{G+d}, vcc quad_perm:[0,1,0,1] row_mask:0xf bank_mask:0xf")
                k("s_mov_b64 vcc, s[54:55]")
                for d in range(4):
                    k(f"v_cndmask_b32_dpp v{O+4+d}, v{G+d}, v{U+d}, vcc quad_perm:[2,3,2,3] row_mask:0xf bank_mask:0xf")
                base = (32 + 2 * b5) + eh
                k(f"buffer_store_dwordx4 v[{O}:{O+3}], v7, s[8:11], s{base} offen")
                k(f"buffer_store_dwordx4 v[{O+4}:{O+7}], v7, s[8:11], s{base} offen offset:1024")
                for dd in range(2):
                    c = CSUM + 4 * (4 * b5 + 2 * eh + dd)
                    k(f"v_mfma_f32_16x16x32_bf16 v[{c}:{c+3}], v[{O+4*dd}:{O+4*dd+3}], v[8:11], v[{c}:{c+3}]")
        if sl == 0:
            for r in (32, 33, 34, 35):
                k(f"s_add_u32 s{r}, s{r}, {14*1024}")
    k("v_lshrrev_b32 v12, 4, v0")
    k("v_lshlrev_b32 v12, 4, v12")
    k("s_lshl_b32 s44, s3, 9")
    k("s_add_u32 s44, s44, 65536")
    k("v_add_u32 v12, s44, v12")
    for t in range(8):
        k(f"ds_write_b128 v12, v[{CSUM+4*t}:{CSUM+4*t+3}] offset:{64*t}")
    k("s_waitcnt lgkmcnt(0)")
    k("s_barrier")
    k("s_cmp_ge_u32 s3, 2")
    k("s_cbranch_scc1 P_PACK_DONE")
    k("s_lshl_b32 s44, s3, 8")
    k("v_lshlrev_b32 v12, 2, v0")
    k("v_add_u32 v12, s44, v12")
    k("v_add_u32 v13, 65536, v12")
    for w in range(4):
        k(f"ds_read_b32 v{16+w}, v13 offset:{512*w}")
    k("s_cmp_eq_u32 s3, 0")
    k("s_cselect_b32 s44, s46, s48")
    k("s_cselect_b32 s45, s47, s49")
    k("v_lshrrev_b32 v14, 4, v0")
    k("v_cmp_gt_u32 vcc, 2, v14")
    k("v_mov_b32 v15, s45")
    k("v_mov_b32 v20, s44")
    k("v_cndmask_b32 v15, v15, v20, vcc")
    k("v_and_b32 v14, 1, v14")
    k("v_add_u32 v15, v15, v14")
    k("s_mul_i32 s44, s25, 448")
    k("v_add_u32 v15, s44, v15")
    k("v_lshlrev_b32 v15, 6, v15")
    k("v_and_b32 v14, 15, v0")
    k("v_lshl_add_u32 v15, v14, 2, v15")
    k(f"s_mov_b32 s44, {WS_CS}")
    k("s_waitcnt lgkmcnt(0)")
    k("v_add_f32 v16, v16, v17")
    k("v_add_f32 v18, v18, v19")
    k("v_add_f32 v16, v16, v18")
    k("buffer_store_dword v16, v15, s[8:11], s44 offen")
    k("P_PACK_DONE:")


def kernel_P(do_pack=True):
    k = Kern("prep_kernel")
    stamp_begin(k)
    k(f"s_cmp_ge_u32 s2, {P_GRID}")
    k("s_cbranch_scc1 P_END")
    wave_lane(k)
    k("s_cmp_ge_u32 s2, 128")
    k("s_cbranch_scc1 P_PACK")
    load_srds(k, [(4, KA_X, 2048 * 1024 * 2), (8, KA_WS, WS_SIZE)])
    emit_ln(k)
    stamp_end(k, 0)
    k("s_endpgm")
    k("P_PACK:")
    load_srds(k, [(8, KA_WS, WS_SIZE), (12, KA_WG, 1024 * 3584 * 2), (20, KA_WU, 1024 * 3584 * 2)])
    k("s_sub_u32 s50, s2, 128")
    emit_pack(k, 50)
    stamp_end(k, 0)
    k("P_END:")
    k("s_endpgm")
    k.fix_hazards()
    return dict(name="prep_kernel", grid=P_GRID, block=256, lds=65536 + 2048, kern=k, vgpr=104, sgpr=96)
```

```python
import re

TRANS = ("v_exp_f32", "v_log_f32", "v_rcp_f32", "v_rsq_f32", "v_sqrt_f32", "v_sin_f32", "v_cos_f32",
         "v_exp_f16", "v_rcp_f16", "v_rcp_iflag_f32")

_reg_re = re.compile(r"^(-|\|)?([vas])(\d+)\|?$")
_rng_re = re.compile(r"^(-|\|)?([vas])\[(\d+):(\d+)\]\|?$")


def regs_of(tok):
    tok = tok.strip()
    m = _reg_re.match(tok)
    if m:
        return [m.group(2) + m.group(3)]
    m = _rng_re.match(tok)
    if m:
        return [m.group(2) + str(i) for i in range(int(m.group(3)), int(m.group(4)) + 1)]
    if tok in ("vcc", "exec"):
        return [tok]
    if tok in ("vcc_lo", "vcc_hi"):
        return ["vcc"]
    if tok in ("exec_lo", "exec_hi"):
        return ["exec"]
    if tok == "m0":
        return ["m0"]
    return []


def split_ops(s):
    out, depth, cur = [], 0, ""
    for ch in s:
        if ch == "[":
            depth += 1
        elif ch == "]":
            depth -= 1
        if ch == "," and depth == 0:
            out.append(cur.strip())
            cur = ""
        else:
            cur += ch
    if cur.strip():
        out.append(cur.strip())
    return out


class Inst:
    __slots__ = ("text", "op", "defs", "uses", "kind", "tags", "passes", "srcc", "srcab", "label", "target",
                 "mods", "nop")

    def __init__(self, text, tags=None):
        self.text = text
        self.tags = tags or {}
        self.label = None
        self.target = None
        self.defs = []
        self.uses = []
        self.passes = 0
        self.srcc = []
        self.srcab = []
        self.nop = 0
        self.mods = ""
        t = text.split(";")[0].strip()
        if t.endswith(":"):
            self.label = t[:-1]
            self.kind = "label"
            self.op = ""
            return
        parts = t.split(None, 1)
        op = parts[0]
        self.op = op
        rest = parts[1] if len(parts) > 1 else ""
        ops = split_ops(rest)
        mods = ""
        if ops:
            last = ops[-1].split()
            if len(last) > 1:
                ops[-1] = last[0]
                mods = " ".join(last[1:])
        self.mods = mods
        R = [regs_of(o) for o in ops]
        base = re.sub(r"_(e32|e64|dpp|sdwa)$", "", op)
        if op.startswith("v_mfma"):
            self.kind = "mfma"
            self.passes = 8 if "32x32x16" in op else 4
            self.defs = R[0]
            self.srcab = R[1] + R[2]
            self.srcc = R[3] if len(R) > 3 else []
            self.uses = self.srcab + self.srcc
        elif op.startswith("v_"):
            self.kind = "valu"
            if base.startswith("v_cmpx"):
                self.defs = R[0] + ["exec"]
                self.uses = sum(R[1:], [])
            elif base.startswith("v_cmp"):
                self.defs = R[0]
                self.uses = sum(R[1:], [])
            elif base in ("v_permlane32_swap_b32", "v_permlane16_swap_b32", "v_swap_b32"):
                self.defs = R[0] + R[1]
                self.uses = R[0] + R[1]
            elif base in ("v_add_co_u32", "v_sub_co_u32", "v_subrev_co_u32"):
                self.defs = R[0] + R[1]
                self.uses = sum(R[2:], [])
            elif base in ("v_addc_co_u32", "v_subb_co_u32"):
                self.defs = R[0] + R[1]
                self.uses = sum(R[2:], [])
            elif base in ("v_fmac_f32", "v_mac_f32", "v_pk_fmac_f16", "v_dot2c_f32_bf16", "v_writelane_b32"):
                self.defs = R[0]
                self.uses = sum(R, [])
            elif base == "v_nop":
                pass
            else:
                self.defs = R[0]
                self.uses = sum(R[1:], [])
                if op.endswith("_dpp") or "quad_perm" in mods or "row_" in mods or op.endswith("_sdwa"):
                    self.uses = self.uses + R[0]
            self.uses = self.uses + ["exec"]
        elif op.startswith("buffer_") or op.startswith("global_"):
            self.kind = "vmem"
            is_lds = bool(re.search(r"(^|\s)lds($|\s)", mods)) or "_lds_" in op
            if "load" in op and not is_lds:
                self.defs = R[0]
                self.uses = sum(R[1:], [])
            elif "atomic" in op and "sc0" in mods:
                self.defs = R[0]
                self.uses = sum(R, [])
            else:
                self.uses = sum(R, [])
            if is_lds:
                self.uses = self.uses + ["m0"]
                self.tags.setdefault("dma", True)
            self.uses = self.uses + ["exec"]
        elif op.startswith("ds_"):
            self.kind = "ds"
            if op.startswith("ds_read") or op.startswith("ds_bpermute") or op.startswith("ds_swizzle") or \
                    op.startswith("ds_permute") or "_rtn" in op:
                self.defs = R[0]
                self.uses = sum(R[1:], [])
            else:
                self.uses = sum(R, [])
            self.uses = self.uses + ["exec"]
        elif op.startswith("s_load") or op in ("s_memtime", "s_memrealtime") or op.startswith("s_buffer_load"):
            self.kind = "smem"
            self.defs = R[0]
            self.uses = sum(R[1:], [])
        elif op == "s_waitcnt":
            self.kind = "wait"
            self.mods = rest
        elif op == "s_nop":
            self.kind = "nop"
            self.nop = int(rest.strip(), 0)
        elif op == "s_barrier":
            self.kind = "barrier"
        elif op == "s_endpgm":
            self.kind = "end"
        elif op.startswith("s_cbranch") or op == "s_branch":
            self.kind = "branch"
            self.target = ops[0]
            if "scc" in op:
                self.uses = ["scc"]
            elif "vcc" in op:
                self.uses = ["vcc"]
            elif "exec" in op:
                self.uses = ["exec"]
        elif op in ("s_setprio", "s_sleep", "s_sethalt", "s_setreg_imm32_b32"):
            self.kind = "salu"
        elif op.startswith("s_"):
            self.kind = "salu"
            if op.startswith("s_cmp") or op.startswith("s_bitcmp"):
                self.defs = ["scc"]
                self.uses = sum(R, [])
            elif "saveexec" in op:
                self.defs = R[0] + ["exec", "scc"]
                self.uses = sum(R[1:], []) + ["exec"]
            else:
                self.defs = list(R[0])
                self.uses = sum(R[1:], [])
                if op.startswith("s_cselect") or op.startswith("s_addc") or op.startswith("s_subb") or \
                        op.startswith("s_cmov"):
                    self.uses = self.uses + ["scc"]
                if not (op.startswith("s_mov") or op.startswith("s_cselect") or op.startswith("s_mul_") or
                        op.startswith("s_cmov") or op.startswith("s_getpc") or op.startswith("s_movk")):
                    self.defs = self.defs + ["scc"]
        else:
            raise ValueError("cannot parse: " + text)

    def is_trans(self):
        return self.kind == "valu" and re.sub(r"_(e32|e64|dpp|sdwa)$", "", self.op) in TRANS

    def ws(self):
        if self.kind == "label":
            return 0
        if self.kind == "nop":
            return self.nop + 1
        return 1


def _ov(a, b):
    sb = set(b)
    for x in a:
        if x in sb:
            return True
    return False


def required_gap(p, c):
    need = 0
    pk, ck = p.kind, c.kind
    c_vregs_use = [r for r in c.uses if r[0] in "va" and r != "vcc"]
    c_vregs_def = [r for r in c.defs if r[0] in "va" and r != "vcc"]
    p_vdefs = [r for r in p.defs if r[0] in "va" and r != "vcc"]
    p_sdefs = [r for r in p.defs if r[0] == "s" and r != "scc" or r == "vcc"]
    if pk == "mfma":
        big = {4: 8, 8: 12}[p.passes]
        if ck == "mfma":
            if _ov(p.defs, c.srcab):
                need = max(need, big)
            if _ov(p.defs, c.srcc):
                if p.defs == c.srcc and p.passes == c.passes:
                    pass
                else:
                    need = max(need, {4: 6, 8: 10}[p.passes])
            if _ov(p.defs, c.defs) and not (p.defs == c.defs and c.defs == c.srcc and p.passes == c.passes):
                need = max(need, {4: 6, 8: 10}[p.passes])
        elif ck in ("valu", "vmem", "ds"):
            if _ov(p.defs, c_vregs_use) or _ov(p.defs, c_vregs_def):
                need = max(need, big)
        if ck == "valu" and _ov(p.srcc, c_vregs_def):
            need = max(need, {4: 3, 8: 7}[p.passes])
        if ck in ("ds", "vmem") and _ov(p.srcc, c_vregs_def):
            need = max(need, {4: 3, 8: 7}[p.passes])
    if pk == "valu":
        if ck == "mfma":
            if _ov(p_vdefs, c.uses):
                need = max(need, 2)
            if "exec" in p.defs:
                need = max(need, 4)
        if ck == "valu":
            opb = re.sub(r"_(e32|e64)$", "", c.op)
            if opb in ("v_readlane_b32", "v_readfirstlane_b32") and _ov(p_vdefs, c_vregs_use):
                need = max(need, 1)
            if opb.startswith("v_permlane") and _ov(p_vdefs, c_vregs_use):
                need = max(need, 2)
            if (c.op.endswith("_dpp") or "quad_perm" in c.mods or "row_" in c.mods) and _ov(p_vdefs, c_vregs_use):
                need = max(need, 2)
            if p.is_trans() and _ov(p_vdefs, c_vregs_use + c_vregs_def):
                need = max(need, 1)
            if (p.op.endswith("_sdwa") or ("op_sel" in p.mods and not p.op.startswith("v_pk_"))) and _ov(p_vdefs, c_vregs_use + c_vregs_def):
                need = max(need, 1)
            if p_sdefs and _ov(p_sdefs, c.uses):
                need = max(need, 2)
                if opb in ("v_readlane_b32", "v_writelane_b32"):
                    need = max(need, 4)
            if "exec" in p.defs:
                if opb in ("v_readlane_b32", "v_readfirstlane_b32", "v_writelane_b32") or opb.startswith("v_permlane"):
                    need = max(need, 4)
                if c.op.endswith("_dpp") or "quad_perm" in c.mods or "row_" in c.mods:
                    need = max(need, 5)
        if ck == "vmem" and p_sdefs and _ov(p_sdefs, c.uses):
            need = max(need, 5)
        if ck in ("salu", "branch", "smem") and p_sdefs and _ov(p_sdefs, c.uses):
            need = max(need, 5 if ck == "branch" else 1)
        if pk == "valu" and p.is_trans() and ck in ("vmem", "ds") and _ov(p_vdefs, c_vregs_use):
            need = max(need, 1)
    if pk == "vmem" and "store" in p.op and ("x4" in p.op or "x3" in p.op):
        data = p.uses
        if ck == "valu" and _ov(data, c_vregs_def):
            need = max(need, 2)
        elif ck in ("ds", "vmem", "mfma") and _ov(data, c_vregs_def):
            need = max(need, 1)
    if pk == "ds" and p.op.startswith("ds_write") and ("b128" in p.op or "b96" in p.op):
        if ck == "valu" and _ov(p.uses, c_vregs_def):
            need = max(need, 2)
    if pk == "salu" and "m0" in p.defs and ("m0" in c.uses):
        need = max(need, 1)
    if pk == "salu" and "exec" in p.defs:
        if ck == "valu" and (c.op.endswith("_dpp") or "quad_perm" in c.mods or "row_" in c.mods
                             or c.op.startswith("v_permlane")):
            need = max(need, 2)
        if ck == "mfma":
            need = max(need, 2)
    return need


class Kern:
    def __init__(self, name):
        self.name = name
        self.ins = []

    def __call__(self, text, **tags):
        for ln in text.split("\n"):
            ln = ln.strip()
            if not ln or ln.startswith(";"):
                continue
            self.ins.append(Inst(ln, dict(tags)))

    def add(self, lst):
        for x in lst:
            if isinstance(x, Inst):
                self.ins.append(x)
            elif isinstance(x, tuple):
                self(x[0], **x[1])
            else:
                self(x)

    def comment(self, s):
        pass

    def fix_hazards(self, verbose=False):
        MAXW = 20
        total = 0
        while True:
            ins = self.ins
            labels = {x.label: i for i, x in enumerate(ins) if x.label}
            preds = {}
            for i, x in enumerate(ins):
                if x.kind == "branch":
                    preds.setdefault(labels[x.target], []).append(i)
            extra = {}
            for i, c in enumerate(ins):
                if c.kind in ("label", "nop", "wait", "barrier", "end"):
                    continue
                worst = 0
                stack = [(i - 1, extra.get(i, 0))]
                seen = set()
                while stack:
                    j, acc = stack.pop()
                    while j >= 0 and acc < MAXW:
                        if (j, acc) in seen:
                            break
                        seen.add((j, acc))
                        p = ins[j]
                        if p.kind == "label":
                            for b in preds.get(j, []):
                                stack.append((b, acc))
                            if j > 0 and (ins[j - 1].kind == "end" or
                                          (ins[j - 1].kind == "branch" and ins[j - 1].op == "s_branch")):
                                break
                            j -= 1
                            continue
                        if p.kind in ("end",):
                            break
                        g = required_gap(p, c)
                        if g > acc:
                            worst = max(worst, g - acc)
                        acc += p.ws() + extra.get(j, 0)
                        j -= 1
                if worst > 0:
                    extra[i] = extra.get(i, 0) + worst
                    total += worst
                    if verbose:
                        print(f"[{self.name}] pad {worst} before: {c.text}")
            if not extra:
                break
            out = []
            for i, c in enumerate(ins):
                n = extra.get(i, 0)
                while n > 0:
                    kk = min(n, 16)
                    out.append(Inst(f"s_nop {kk-1}"))
                    n -= kk
                out.append(c)
            self.ins = out
        return total

    def text(self):
        return "\n".join((x.text if x.label else "    " + x.text) for x in self.ins) + "\n"

    def count(self):
        return sum(1 for x in self.ins if x.kind != "label")

    def maxregs(self):
        mv = ma = ms = -1
        for x in self.ins:
            for r in x.defs + x.uses:
                if r[0] == "v" and r[1:].isdigit():
                    mv = max(mv, int(r[1:]))
                elif r[0] == "a" and r[1:].isdigit():
                    ma = max(ma, int(r[1:]))
                elif r[0] == "s" and r[1:].isdigit():
                    ms = max(ms, int(r[1:]))
        return mv + 1, ma + 1, ms + 1


def parse_wait(mods):
    vm = lg = None
    m = re.search(r"vmcnt\((\d+)\)", mods)
    if m:
        vm = int(m.group(1))
    m = re.search(r"lgkmcnt\((\d+)\)", mods)
    if m:
        lg = int(m.group(1))
    return vm, lg


def check_trace(trace, name="", verbose=True):
    errs = []
    vq = []
    lq = []
    pend = {}
    nbar = 0
    fill_done_bar = {}
    fill_pending = {}
    fill_retired = {}
    use_pending = {}
    use_retired_bar = {}
    last_use_key = {}
    smem_out = False
    for idx, x in enumerate(trace):
        if x.kind in ("label", "nop"):
            continue
        if x.kind == "wait":
            vm, lg = parse_wait(x.mods)
            if vm is not None:
                while len(vq) > vm:
                    y = vq.pop(0)
                    for r in y.defs:
                        if pend.get(r) is y:
                            del pend[r]
                    k = y.tags.get("fill")
                    if k is not None:
                        fill_pending[k] -= 1
                        fill_retired[k] = nbar
            if lg is not None:
                if smem_out and lg != 0:
                    pass
                else:
                    while len(lq) > lg:
                        y = lq.pop(0)
                        for r in y.defs:
                            if pend.get(r) is y:
                                del pend[r]
                        k = y.tags.get("use")
                        if k is not None:
                            use_pending[k[0]] -= 1
                            use_retired_bar[k[0]] = nbar
                        k = y.tags.get("fill")
                        if k is not None:
                            fill_pending[k] -= 1
                            fill_retired[k] = nbar
                    if lg == 0:
                        smem_out = False
            continue
        if x.kind == "barrier":
            nbar += 1
            continue
        for r in x.uses + x.defs:
            if r in pend:
                y = pend[r]
                if r in x.defs and r not in x.uses and x.kind == y.kind and x.kind in ("ds",):
                    continue
                errs.append(f"{name}: [{idx}] '{x.text}' touches {r} pending from '{y.text}'")
        k = x.tags.get("use")
        if k is not None:
            local = x.tags.get("local", False)
            if k not in fill_pending:
                errs.append(f"{name}: [{idx}] read of never-filled {k}: {x.text}")
            elif fill_pending[k] != 0:
                errs.append(f"{name}: [{idx}] read of {k} while fills outstanding: {x.text}")
            elif not local and fill_retired[k] >= nbar:
                errs.append(f"{name}: [{idx}] read of {k} without barrier after fill retire: {x.text}")
            use_pending[k[0]] = use_pending.get(k[0], 0) + 1
            last_use_key[k[0]] = k
        k = x.tags.get("fill")
        if k is not None:
            local = x.tags.get("local", False)
            reg = k[0]
            if last_use_key.get(reg) is not None and last_use_key[reg] != k:
                if use_pending.get(reg, 0) != 0:
                    errs.append(f"{name}: [{idx}] fill {k} while reads of {last_use_key[reg]} outstanding: {x.text}")
                elif not local and use_retired_bar.get(reg, -1) >= nbar:
                    errs.append(f"{name}: [{idx}] fill {k} without barrier after reads of {last_use_key[reg]}: {x.text}")
            fill_pending[k] = fill_pending.get(k, 0) + 1
        if x.kind == "vmem":
            vq.append(x)
            for r in x.defs:
                pend[r] = x
            if len(vq) > 63:
                errs.append(f"{name}: [{idx}] more than 63 vmem outstanding")
        elif x.kind == "ds":
            lq.append(x)
            for r in x.defs:
                pend[r] = x
            if len(lq) > 15 + 0:
                pass
        elif x.kind == "smem":
            lq.append(x)
            smem_out = True
            for r in x.defs:
                pend[r] = x
    if verbose:
        for e in errs[:20]:
            print("WAITERR", e)
        print(f"check_trace {name}: {len(errs)} errors over {len(trace)} instrs")
    return errs
```

```python
import sys
from common import *
import k_prep, k1

def main(out, which):
    ks = []
    if "P" in which:
        ks.append(k_prep.kernel_P())
    if "1" in which:
        k1.kernel_K1(unrolled=True, check=True)
        ks.append(k1.kernel_K1())
    if "2" in which:
        import k2
        k2.kernel_K2(unrolled=True, check=True)
        ks.append(k2.kernel_K2())
    if "3" in which:
        import k35
        k35.kernel_K3(unrolled=True, check=True)
        ks.append(k35.kernel_K3())
    if "4" in which:
        import k4
        k4.kernel_K4(unrolled=True, check=True)
        ks.append(k4.kernel_K4())
    if "5" in which:
        import k35
        k35.kernel_K5(unrolled=True, check=True)
        ks.append(k35.kernel_K5())
    for kd in ks:
        print(kd["name"], "instrs", kd["kern"].count(), "regs", kd["kern"].maxregs(), "declared vgpr", kd["vgpr"], "lds", kd["lds"])
    open(out, "w").write(build_file(ks))

if __name__ == "__main__":
    main(sys.argv[1], sys.argv[2])
```

```python
import sys
from common import *
import gen
def noop():
    k = Kern("noop_kernel")
    k("s_endpgm")
    return dict(name="noop_kernel", grid=1, block=64, lds=0, kern=k, vgpr=8, sgpr=96)
import k_prep,k1,k2,k35,k4
base = [k_prep.kernel_P(), k1.kernel_K1(), k2.kernel_K2(), k35.kernel_K3(), k4.kernel_K4(), k35.kernel_K5()]
open("v_base.s","w").write(build_file(base))
n = noop()
open("v_noop6.s","w").write(build_file(base + [n]*6))
open("v_noop18.s","w").write(build_file(base + [n]*18))
open("v_k5x2.s","w").write(build_file(base + [base[5]]))
open("v_k2x2.s","w").write(build_file(base[:3] + [base[2]] + base[3:]))
open("v_k4x2.s","w").write(build_file(base[:5] + [base[4]] + base[5:]))
```

```python
from kb import Kern, Inst, check_trace

S_TOK, D, H, DH, DF = 2048, 1024, 32, 32, 3584

WS_XN = 0x0000000
WS_Q = 0x0400000
WS_KV = 0x0800000
WS_O = 0x1000000
WS_H = 0x1400000
WS_STAT = 0x1800000
WS_CS = 0x1880000
WS_WGU = 0x1900000
WS_HH = 0x2800000
WS_SIZE = 0x10000000

KA_X, KA_WQKV, KA_WO, KA_BX, KA_WG, KA_WU, KA_WD, KA_OUT, KA_DBG, KA_WS = [8 * i for i in range(10)]


def v(i, n=1):
    return f"v{i}" if n == 1 else f"v[{i}:{i+n-1}]"


def a_(i, n=1):
    return f"a{i}" if n == 1 else f"a[{i}:{i+n-1}]"


def s(i, n=1):
    return f"s{i}" if n == 1 else f"s[{i}:{i+n-1}]"


def srd_from(k, d, base, nbytes):
    k(f"s_mov_b32 s{d}, s{base}")
    k(f"s_mov_b32 s{d+1}, s{base+1}")
    k(f"s_mov_b32 s{d+2}, {nbytes:#x}")
    k(f"s_mov_b32 s{d+3}, 0x00020000")


def load_srds(k, lst, tmp=40):
    for i, (d, off, nb) in enumerate(lst):
        k(f"s_load_dwordx2 s[{tmp+2*i}:{tmp+2*i+1}], s[0:1], {off}")
    k("s_waitcnt lgkmcnt(0)")
    for i, (d, off, nb) in enumerate(lst):
        srd_from(k, d, tmp + 2 * i, nb)


def kdesc(name, vgpr, agpr=0, sgpr=96):
    acc = (vgpr + 3) // 4 * 4
    tot = acc + agpr if agpr else vgpr
    return (f".p2align 6\n.amdhsa_kernel {name}\n"
            f"  .amdhsa_next_free_vgpr {tot}\n"
            f"  .amdhsa_next_free_sgpr {sgpr}\n"
            f"  .amdhsa_accum_offset {acc}\n"
            f"  .amdhsa_group_segment_fixed_size 0\n"
            f"  .amdhsa_kernarg_size 80\n"
            f"  .amdhsa_user_sgpr_count 2\n"
            f"  .amdhsa_user_sgpr_kernarg_segment_ptr 1\n"
            f"  .amdhsa_system_sgpr_workgroup_id_x 1\n"
            f".end_amdhsa_kernel\n")


def khead(name):
    return f".globl {name}\n.p2align 8\n.type {name},@function\n{name}:\n"


HEADER = """; Kernarg layout for this problem (80 bytes, ptrs only, base s[0:1]):
"""


def build_file(kernels):
    out = HEADER
    for kd in kernels:
        out += f"; @launch kernel={kd['name']} grid=({kd['grid']},1,1) block=({kd['block']},1,1) lds={kd['lds']}\n"
    out += '.amdgcn_target "amdgcn-amd-amdhsa--gfx950"\n.text\n'
    seen = set()
    for kd in kernels:
        if kd["name"] in seen:
            continue
        seen.add(kd["name"])
        out += khead(kd["name"]) + kd["kern"].text()
    out += '.section .rodata,"a"\n'
    seen = set()
    for kd in kernels:
        if kd["name"] in seen:
            continue
        seen.add(kd["name"])
        out += kdesc(kd["name"], kd["vgpr"], kd.get("agpr", 0), kd.get("sgpr", 96))
    return out


def allreduce_rows(k, x, tmp, op="v_add_f32"):
    k(f"v_mov_b32 v{tmp}, v{x}")
    k(f"v_permlane16_swap_b32 v{x}, v{tmp}")
    k(f"{op} v{x}, v{x}, v{tmp}")
    k(f"v_mov_b32 v{tmp}, v{x}")
    k(f"v_permlane32_swap_b32 v{x}, v{tmp}")
    k(f"{op} v{x}, v{x}, v{tmp}")


import struct


def f2h(x):
    return "0x%08x" % struct.unpack("<I", struct.pack("<f", x))[0]


STAMP = False


def stamp_begin(k):
    if STAMP:
        k("s_memtime s[88:89]")
        k("s_memrealtime s[90:91]")


def stamp_end(k, idx, wg=0):
    if not STAMP:
        return
    lab = f"STAMP_SKIP_{idx}"
    k(f"s_cmp_lg_u32 s2, {wg}")
    k(f"s_cbranch_scc1 {lab}")
    k("s_cmp_lg_u32 s3, 0")
    k(f"s_cbranch_scc1 {lab}")
    k("s_waitcnt vmcnt(0) lgkmcnt(0)")
    k("s_memtime s[92:93]")
    k("s_memrealtime s[94:95]")
    k("s_load_dwordx2 s[84:85], s[0:1], 64")
    k("s_waitcnt lgkmcnt(0)")
    k(f"s_sub_u32 s84, s84, {512*idx}")
    k("s_subb_u32 s85, s85, 0")
    k("s_mov_b32 s86, 256")
    k("s_mov_b32 s87, 0x00020000")
    k("s_sub_u32 s92, s92, s88")
    k("s_sub_u32 s94, s94, s90")
    k("s_lshl_b32 s94, s94, 20")
    k("s_or_b32 s92, s92, s94")
    k("v_mov_b32 v2, s90")
    k("v_mov_b32 v3, s92")
    k(f"v_mov_b32 v4, {8*idx}")
    k("buffer_store_dwordx2 v[2:3], v4, s[84:87], 0 offen")
    k("s_waitcnt vmcnt(0)")
    k(f"{lab}:")
```

```python
import sys
import common
from common import *
import k_prep, k1, k2, k35, k4

def build_all(which="P12345", check=True, **kw):
    ks = []
    if "P" in which:
        ks.append(k_prep.kernel_P())
    if "1" in which:
        if check: k1.kernel_K1(unrolled=True, check=True)
        ks.append(k1.kernel_K1())
    if "2" in which:
        if check: k2.kernel_K2(unrolled=True, check=True)
        ks.append(k2.kernel_K2())
    if "3" in which:
        if check: k35.kernel_K3(unrolled=True, check=True)
        ks.append(k35.kernel_K3())
    if "4" in which:
        if check: k4.kernel_K4(unrolled=True, check=True)
        ks.append(k4.kernel_K4())
    if "5" in which:
        if check: k35.kernel_K5(unrolled=True, check=True)
        ks.append(k35.kernel_K5())
    return ks

def main(out, which, opts):
    if "stamp" in opts:
        common.STAMP = True
    ks = build_all(which)
    for kd in ks:
        print(kd["name"], "instrs", kd["kern"].count(), "regs", kd["kern"].maxregs(), "declared vgpr", kd["vgpr"], "lds", kd["lds"])
    open(out, "w").write(build_file(ks))

if __name__ == "__main__":
    main(sys.argv[1], sys.argv[2], sys.argv[3:])
```

```python
from kb import Kern, Inst, check_trace

S_TOK, D, H, DH, DF = 2048, 1024, 32, 32, 3584

WS_XN = 0x0000000
WS_Q = 0x0400000
WS_KV = 0x0800000
WS_O = 0x1000000
WS_H = 0x1400000
WS_STAT = 0x1800000
WS_ST1 = 0x1860000
WS_CS = 0x1880000
WS_WGU = 0x1900000
WS_HH = 0x2800000
WS_SIZE = 0x10000000

KA_X, KA_WQKV, KA_WO, KA_BX, KA_WG, KA_WU, KA_WD, KA_OUT, KA_DBG, KA_WS = [8 * i for i in range(10)]


def v(i, n=1):
    return f"v{i}" if n == 1 else f"v[{i}:{i+n-1}]"


def a_(i, n=1):
    return f"a{i}" if n == 1 else f"a[{i}:{i+n-1}]"


def s(i, n=1):
    return f"s{i}" if n == 1 else f"s[{i}:{i+n-1}]"


def srd_from(k, d, base, nbytes):
    k(f"s_mov_b32 s{d}, s{base}")
    k(f"s_mov_b32 s{d+1}, s{base+1}")
    k(f"s_mov_b32 s{d+2}, {nbytes:#x}")
    k(f"s_mov_b32 s{d+3}, 0x00020000")


def load_srds(k, lst, tmp=40):
    for i, (d, off, nb) in enumerate(lst):
        k(f"s_load_dwordx2 s[{tmp+2*i}:{tmp+2*i+1}], s[0:1], {off}")
    k("s_waitcnt lgkmcnt(0)")
    for i, (d, off, nb) in enumerate(lst):
        srd_from(k, d, tmp + 2 * i, nb)


def kdesc(name, vgpr, agpr=0, sgpr=96):
    acc = (vgpr + 3) // 4 * 4
    tot = acc + agpr if agpr else vgpr
    return (f".p2align 6\n.amdhsa_kernel {name}\n"
            f"  .amdhsa_next_free_vgpr {tot}\n"
            f"  .amdhsa_next_free_sgpr {sgpr}\n"
            f"  .amdhsa_accum_offset {acc}\n"
            f"  .amdhsa_group_segment_fixed_size 0\n"
            f"  .amdhsa_kernarg_size 80\n"
            f"  .amdhsa_user_sgpr_count 2\n"
            f"  .amdhsa_user_sgpr_kernarg_segment_ptr 1\n"
            f"  .amdhsa_system_sgpr_workgroup_id_x 1\n"
            f".end_amdhsa_kernel\n")


def khead(name):
    return f".globl {name}\n.p2align 8\n.type {name},@function\n{name}:\n"


HEADER = """; Kernarg layout for this problem (80 bytes, ptrs only, base s[0:1]):
"""


def build_file(kernels):
    out = HEADER
    for kd in kernels:
        out += f"; @launch kernel={kd['name']} grid=({kd['grid']},1,1) block=({kd['block']},1,1) lds={kd['lds']}\n"
    out += '.amdgcn_target "amdgcn-amd-amdhsa--gfx950"\n.text\n'
    seen = set()
    for kd in kernels:
        if kd["name"] in seen:
            continue
        seen.add(kd["name"])
        out += khead(kd["name"]) + kd["kern"].text()
    out += '.section .rodata,"a"\n'
    seen = set()
    for kd in kernels:
        if kd["name"] in seen:
            continue
        seen.add(kd["name"])
        out += kdesc(kd["name"], kd["vgpr"], kd.get("agpr", 0), kd.get("sgpr", 96))
    return out


def allreduce_rows(k, x, tmp, op="v_add_f32"):
    k(f"v_mov_b32 v{tmp}, v{x}")
    k(f"v_permlane16_swap_b32 v{x}, v{tmp}")
    k(f"{op} v{x}, v{x}, v{tmp}")
    k(f"v_mov_b32 v{tmp}, v{x}")
    k(f"v_permlane32_swap_b32 v{x}, v{tmp}")
    k(f"{op} v{x}, v{x}, v{tmp}")


import struct


def f2h(x):
    return "0x%08x" % struct.unpack("<I", struct.pack("<f", x))[0]


STAMP = False
WS_PROF = 0x4000000


def stamp_begin(k):
    if STAMP:
        k("s_memtime s[72:73]")
        k("s_memrealtime s[84:85]")


def stamp(k, i):
    if STAMP:
        k(f"s_memtime s[{72+2*i}:{73+2*i}]")


def stamp_end(k, idx, wg=0):
    if not STAMP:
        return
    lab = f"STAMP_SKIP_{idx}_{len(k.ins)}"
    k("s_cmp_lg_u32 s3, 0")
    k(f"s_cbranch_scc1 {lab}")
    k("s_cmp_ge_u32 s2, 512")
    k(f"s_cbranch_scc1 {lab}")
    k("s_waitcnt vmcnt(0) lgkmcnt(0)")
    k("s_memtime s[82:83]")
    k("s_memrealtime s[86:87]")
    k("s_load_dwordx2 s[88:89], s[0:1], 72")
    k("s_getreg_b32 s92, hwreg(HW_REG_XCC_ID)")
    k("s_getreg_b32 s93, hwreg(HW_REG_HW_ID)")
    k("s_waitcnt lgkmcnt(0)")
    k("s_mov_b32 s90, 0x10000000")
    k("s_mov_b32 s91, 0x00020000")
    k("s_lshl_b32 s94, s2, 6")
    k(f"s_add_u32 s94, s94, {WS_PROF + idx*512*64}")
    vals = [84, 86, 72, 74, 76, 78, 80, 82]
    for j, r in enumerate(vals):
        k(f"v_mov_b32 v{2+j}, s{r}")
    k("v_mov_b32 v10, s92")
    k("v_mov_b32 v11, s93")
    k("v_mov_b32 v12, 0")
    k("buffer_store_dwordx4 v[2:5], v12, s[88:91], s94 offen")
    k("buffer_store_dwordx4 v[6:9], v12, s[88:91], s94 offen offset:16")
    k("buffer_store_dwordx2 v[10:11], v12, s[88:91], s94 offen offset:32")
    k("s_waitcnt vmcnt(0)")
    k(f"{lab}:")
```

```python
from common import *
from gemm import T, Loop
from k_prep import wave_lane
import math

K1_R = 3
SLOT1 = 40960


def kernel_K1(R=K1_R, unrolled=False, check=False):
    k = Kern("qkv_kernel")
    stamp_begin(k)
    k("s_cmp_ge_u32 s2, 256")
    k("s_cbranch_scc1 K1_END")
    wave_lane(k)
    load_srds(k, [(4, KA_WQKV, 1024 * 3072 * 2), (8, KA_WS, WS_SIZE)])
    stamp(k, 3)
    k("s_and_b32 s16, s2, 7")
    k("s_lshr_b32 s17, s2, 3")
    k("s_lshr_b32 s18, s16, 2")
    k("s_lshl_b32 s18, s18, 3")
    k("s_and_b32 s19, s17, 7")
    k("s_add_u32 s18, s18, s19")
    k("s_and_b32 s19, s16, 3")
    k("s_lshl_b32 s19, s19, 2")
    k("s_lshr_b32 s20, s17, 3")
    k("s_add_u32 s19, s19, s20")
    k("s_and_b32 s21, s3, 3")
    k("s_lshr_b32 s22, s3, 2")
    k("s_lshl_b32 s24, s22, 7")
    k("s_lshl_b32 s25, s18, 3")
    k("s_add_u32 s24, s24, s25")
    k("s_lshl_b32 s25, s21, 1")
    k("s_add_u32 s24, s24, s25")
    k("s_lshl_b32 s24, s24, 10")
    if WS_XN:
        k(f"s_add_u32 s24, s24, {WS_XN}")
    k(f"s_mul_i32 s25, s3, {8*6144}")
    k("s_lshl_b32 s26, s19, 7")
    k("s_add_u32 s25, s25, s26")
    k("s_lshl_b32 s26, s3, 11")
    k("s_mul_i32 s27, s3, 3072")
    k("s_add_u32 s27, s27, 16384")
    VL = 1
    VA = 2
    k(f"v_lshlrev_b32 v{VL}, 4, v0")
    k("v_lshrrev_b32 v5, 3, v0")
    k("s_movk_i32 s28, 6144")
    k("v_mul_lo_u32 v6, v5, s28")
    k("v_bfe_u32 v7, v0, 4, 1")
    k("s_and_b32 s29, s3, 1")
    k("s_lshl_b32 s29, s29, 1")
    k("v_or_b32 v7, s29, v7")
    k("v_bfe_u32 v8, v0, 1, 2")
    k("v_xor_b32 v7, v7, v8")
    k("v_lshlrev_b32 v7, 5, v7")
    k("v_and_b32 v8, 1, v0")
    k("v_lshl_add_u32 v7, v8, 4, v7")
    k("v_add_u32 v6, v6, v7")
    for sub in range(3):
        k(f"v_add_u32 v{VA+sub}, {1024*sub}, v6")
    VB = 5
    VT = VB + R
    k("s_lshl_b32 s29, s21, 11")
    k(f"v_add_u32 v{VB}, s29, v{VL}")
    for sl in range(1, R):
        k(f"v_add_u32 v{VB+sl}, {sl*SLOT1}, v{VB}")
    t0, t1, t2 = 30, 31, 32
    k(f"v_lshrrev_b32 v{t0}, 4, v0")
    k(f"v_mul_u32_u24 v{t1}, 3072, v{t0}")
    k(f"v_bfe_u32 v{t2}, v0, 2, 2")
    k(f"v_lshl_add_u32 v{t1}, v{t2}, 7, v{t1}")
    k(f"v_and_b32 v33, 3, v0")
    k(f"v_lshl_add_u32 v{t1}, v33, 3, v{t1}")
    k(f"v_lshrrev_b32 v{t2}, 1, v{t2}")
    k(f"v_and_b32 v{t0}, 1, v{t0}")
    k(f"v_lshl_add_u32 v{t2}, v{t0}, 1, v{t2}")
    k("s_lshl_b32 s29, s22, 1")
    for i in range(2):
        k(f"v_xor_b32 v33, s29, v{t2}")
        if i:
            k("v_xor_b32 v33, 1, v33")
        k(f"v_lshl_add_u32 v{VT+i}, v33, 5, v{t1}")
        k(f"v_add_u32 v{VT+i}, 16384, v{VT+i}")
        for sl in range(1, R):
            k(f"v_add_u32 v{VT+2*sl+i}, {sl*SLOT1}, v{VT+i}")
    ACC = 32
    FA = ACC + 48
    FB = FA + 48
    NV = FB + 16
    assert VT + 2 * R <= 30

    def acc(t, mt):
        return ACC + (t * 2 + mt) * 4

    def reads(slot, ks, buf, st):
        out = []
        for mt in range(2):
            r = FB + buf * 8 + mt * 4
            out.append(T(f"ds_read_b128 v[{r}:{r+3}], v{VB+slot} offset:{ks*8192 + mt*1024}", use=(("B", slot), st)))
        for t in range(6):
            sub, i = t >> 1, t & 1
            for h in range(2):
                r = FA + buf * 24 + t * 4 + 2 * h
                out.append(T(f"ds_read_b64_tr_b16 v[{r}:{r+1}], v{VT+2*slot+i} offset:{ks*12288 + sub*1024 + h*512}",
                             use=(("A", slot), st)))
        return out

    def mfmas(buf):
        out = []
        for t in range(6):
            for mt in range(2):
                a = FA + buf * 24 + t * 4
                b = FB + buf * 8 + mt * 4
                c = acc(t, mt)
                if t < 4:
                    out.append(T(f"v_mfma_f32_16x16x32_bf16 v[{c}:{c+3}], v[{a}:{a+3}], v[{b}:{b+3}], v[{c}:{c+3}]"))
                else:
                    out.append(T(f"v_mfma_f32_16x16x32_bf16 v[{c}:{c+3}], v[{b}:{b+3}], v[{a}:{a+3}], v[{c}:{c+3}]"))
        return out

    def dma(slot, st):
        g1 = [T(f"s_add_u32 m0, s26, {slot*SLOT1}")]
        for i in range(2):
            g1.append(T(f"buffer_load_dwordx4 v{VL}, s[8:11], s24 offen offset:{1024*i} lds", fill=(("B", slot), st)))
        g1.append(T(f"s_add_u32 s24, s24, {2*128*1024}", bump=True))
        g2 = [T(f"s_add_u32 m0, s27, {slot*SLOT1}")]
        for sub in range(3):
            g2.append(T(f"buffer_load_dwordx4 v{VA+sub}, s[4:7], s25 offen offset:{1024*sub} lds", fill=(("A", slot), st)))
        g2.append(T(f"s_add_u32 s25, s25, {64*6144}", bump=True))
        return [g1, g2]

    L = Loop("k1", 16, 2, R, 5, reads, mfmas, dma, 30,
             rpos=lambda i, nr, nm: (i * nm) // (nr + 2),
             dpos=lambda i, nd, nm: 2 + 2 * i)
    L.prologue_dma(k)
    stamp(k, 4)
    for i in range(48):
        k(f"v_mov_b32 v{ACC+i}, 0")
    L.prologue_sync(k)
    stamp(k, 1)
    L.emit(k, unrolled=unrolled)
    stamp(k, 2)
    k("s_lshl_b32 s31, s19, 1")
    k("s_add_u32 s31, s31, s22")
    k("s_lshl_b32 s32, s18, 3")
    k("s_lshl_b32 s33, s21, 1")
    k("s_add_u32 s32, s32, s33")
    k("s_lshl_b32 s33, s31, 7")
    k("s_add_u32 s33, s33, s32")
    k("s_lshl_b32 s33, s33, 10")
    k(f"s_add_u32 s33, s33, {WS_Q}")
    k("s_lshl_b32 s34, s31, 6")
    k("s_lshr_b32 s35, s32, 1")
    k("s_add_u32 s34, s34, s35")
    k("s_lshl_b32 s34, s34, 12")
    k(f"s_add_u32 s34, s34, {WS_KV}")
    qs = (32 ** -0.5) * math.log2(math.e)
    k(f"s_mov_b32 s36, {f2h(qs)}")
    O = FA
    for mt in range(2):
        for t in range(2):
            c = acc(t, mt)
            for r in range(4):
                k(f"v_mul_f32 v{c+r}, s36, v{c+r}")
        for t in range(2):
            c = acc(t, mt)
            k(f"v_cvt_pk_bf16_f32 v{O+4*mt+2*t}, v{c}, v{c+1}")
            k(f"v_cvt_pk_bf16_f32 v{O+4*mt+2*t+1}, v{c+2}, v{c+3}")
        k(f"buffer_store_dwordx4 v[{O+4*mt}:{O+4*mt+3}], v{VL}, s[8:11], s33 offen offset:{1024*mt}")
    O2 = O + 8
    for mt in range(2):
        for t in range(2):
            c = acc(2 + t, mt)
            k(f"v_cvt_pk_bf16_f32 v{O2+4*mt+2*t}, v{c}, v{c+1}")
            k(f"v_cvt_pk_bf16_f32 v{O2+4*mt+2*t+1}, v{c+2}, v{c+3}")
        k(f"buffer_store_dwordx4 v[{O2+4*mt}:{O2+4*mt+3}], v{VL}, s[8:11], s34 offen offset:{1024*mt}")
    O3 = O2 + 8
    for t in range(2):
        for mt in range(2):
            c = acc(4 + t, mt)
            k(f"v_cvt_pk_bf16_f32 v{O3+4*t+2*mt}, v{c}, v{c+1}")
            k(f"v_cvt_pk_bf16_f32 v{O3+4*t+2*mt+1}, v{c+2}, v{c+3}")
        k(f"buffer_store_dwordx4 v[{O3+4*t}:{O3+4*t+3}], v{VL}, s[8:11], s34 offen offset:{2048+1024*t}")
    k("K1_END:")
    stamp_end(k, 1)
    k("s_endpgm")
    if check:
        check_trace(k.ins, "K1")
        return None
    k.fix_hazards()
    return dict(name="qkv_kernel", grid=256, block=512, lds=R * SLOT1, kern=k, vgpr=NV, sgpr=96)
```

```python
from common import *
from gemm import T
from k_prep import wave_lane

R2 = 4
LDS2 = 98304
FLAG = 65536

ORDER = ("W M1 e0 e1 SYNC rK0 e2 e3 W M5 e4 e5 rV1 c0 c1 e6 W M2 e7 e8 rK1 c2 c3 e9 "
         "M6 e10 e11 W M3 e12 e13 rV0 e14 e15 M4 c4 c5 c6 c7").split()


def kernel_K2(unrolled=False, check=False, order=ORDER, extra_setup=None):
    k = Kern("attn_kernel")
    stamp_begin(k)
    k("s_cmp_ge_u32 s2, 256")
    k("s_cbranch_scc1 K2_END")
    wave_lane(k)
    load_srds(k, [(8, KA_WS, WS_SIZE)])
    stamp(k, 3)
    k("s_and_b32 s16, s2, 7")
    k("s_lshr_b32 s17, s2, 3")
    k("s_lshl_b32 s18, s16, 2")
    k("s_and_b32 s19, s17, 3")
    k("s_add_u32 s18, s18, s19")
    k("s_lshr_b32 s19, s17, 2")
    k("s_lshl_b32 s20, s18, 7")
    k("s_lshl_b32 s21, s19, 4")
    k("s_add_u32 s20, s20, s21")
    k("s_lshl_b32 s21, s3, 1")
    k("s_add_u32 s20, s20, s21")
    k("s_lshl_b32 s20, s20, 10")
    k(f"s_add_u32 s21, s20, {WS_Q}")
    k(f"s_add_u32 s22, s20, {WS_O}")
    k("s_lshl_b32 s23, s18, 18")
    k(f"s_add_u32 s23, s23, {WS_KV}")
    k("s_lshl_b32 s24, s3, 11")
    k("s_add_u32 s27, s23, s24")
    k("s_mov_b32 s28, 0")
    VL, VQ, VK = 1, 2, 3
    k(f"v_lshlrev_b32 v{VL}, 4, v0")
    k("v_bfe_u32 v4, v0, 4, 1")
    k("v_lshlrev_b32 v4, 10, v4")
    k("v_lshrrev_b32 v5, 5, v0")
    k("v_lshl_add_u32 v4, v5, 8, v4")
    k("v_and_b32 v6, 15, v0")
    k(f"v_lshl_add_u32 v{VQ}, v6, 4, v4")
    k("v_bfe_u32 v4, v0, 3, 1")
    k("v_lshlrev_b32 v4, 10, v4")
    k("v_lshl_add_u32 v4, v5, 8, v4")
    k("v_bfe_u32 v6, v0, 4, 1")
    k("v_lshl_add_u32 v4, v6, 7, v4")
    k("v_and_b32 v6, 7, v0")
    k(f"v_lshl_add_u32 v{VK}, v6, 4, v4")
    Q, KF, VF, P, ONES, L = 8, 16, 24, 32, 40, 44
    O, C, S = 48, 64, 80
    NV = S + 32
    for p in range(2):
        k(f"buffer_load_dwordx4 v[{Q+4*p}:{Q+4*p+3}], v{VQ}, s[8:11], s21 offen offset:{512*p}")
    k("v_bfe_u32 v4, v0, 2, 1")
    k("v_bfe_u32 v5, v0, 4, 1")
    k("v_xor_b32 v4, v4, v5")
    k("v_and_b32 v5, 3, v0")
    k("v_or_b32 v4, v4, v5")
    k("v_cmp_eq_u32 vcc, 0, v4")
    k("v_mov_b32 v5, 0x3f803f80")
    for d in range(4):
        k(f"v_cndmask_b32 v{ONES+d}, 0, v5, vcc")
    for i in range(16):
        k(f"v_mov_b32 v{C+i}, 0")
    k(f"v_mov_b32 v6, {FLAG}")
    k("v_mov_b32 v7, 0")
    k("ds_write_b32 v6, v7")

    def dma(st):
        slot = st % R2
        return [T("s_add_u32 s26, s27, s25"),
                T(f"s_add_u32 m0, s24, {slot*16384}"),
                T(f"buffer_load_dwordx4 v{VL}, s[8:11], s26 offen lds", fill=(slot, st)),
                T(f"buffer_load_dwordx4 v{VL}, s[8:11], s26 offen offset:1024 lds", fill=(slot, st)),
                T("s_add_u32 s25, s25, 16384"),
                T("s_and_b32 s25, s25, 0x3ffff")]

    def rd(kind, tile, half):
        st, tl = tile >> 2, tile & 3
        slot = st % R2
        if kind == "K":
            r = KF + 4 * half
            return T(f"ds_read_b128 v[{r}:{r+3}], v{VK} offset:{slot*16384 + tl*4096 + 512*half}", use=(slot, st))
        r = VF + 4 * half
        return T(f"ds_read_b128 v[{r}:{r+3}], v{VQ} offset:{slot*16384 + tl*4096 + 2048 + 512*half}", use=(slot, st))

    def m32(d, a, b, c):
        return T(f"v_mfma_f32_32x32x16_bf16 v[{d}:{d+15}], v[{a}:{a+3}], v[{b}:{b+3}], v[{c}:{c+15}]")

    def m16(d, a, b):
        return T(f"v_mfma_f32_16x16x32_bf16 v[{d}:{d+3}], v[{a}:{a+3}], v[{b}:{b+3}], v[{d}:{d+3}]")

    def iteration(i):
        cur = S + 16 * (i & 1)
        nxt = S + 16 * ((i + 1) & 1)
        for tok in order:
            if tok == "W":
                k("s_waitcnt lgkmcnt(3)")
            elif tok == "M1":
                k.add([m32(nxt, KF, Q, C)])
            elif tok == "M2":
                k.add([m32(nxt, KF + 4, Q + 4, nxt)])
            elif tok == "M3":
                k.add([m32(O, VF, P, O)])
            elif tok == "M4":
                k.add([m16(L, ONES, P)])
            elif tok == "M5":
                k.add([m32(O, VF + 4, P + 4, O)])
            elif tok == "M6":
                k.add([m16(L, ONES, P + 4)])
            elif tok == "SYNC":
                if i % 4 == 2:
                    k(f"s_waitcnt vmcnt({(R2-3)*2})")
                    k("s_barrier")
                    k.add(dma((i >> 2) + R2 - 1))
            elif tok == "rK0":
                k.add([rd("K", i + 2, 0)])
            elif tok == "rK1":
                k.add([rd("K", i + 2, 1)])
            elif tok == "rV0":
                k.add([rd("V", i + 1, 0)])
            elif tok == "rV1":
                k.add([rd("V", i, 1)])
            elif tok[0] == "e":
                j = int(tok[1:])
                k(f"v_exp_f32 v{cur+j}, v{cur+j}")
            elif tok[0] == "c":
                j = int(tok[1:])
                k(f"v_cvt_pk_bf16_f32 v{P+j}, v{cur+2*j}, v{cur+2*j+1}")
            else:
                raise ValueError(tok)

    k("K2_RUN:")
    k("s_mov_b32 s25, 0")
    for st in range(R2 - 1):
        k.add(dma(st))
    stamp(k, 4)
    for i in range(16):
        k(f"v_mov_b32 v{O+i}, 0")
    for i in range(4):
        k(f"v_mov_b32 v{L+i}, 0")
        k(f"v_mov_b32 v{P+4+i}, 0")
        k(f"v_mov_b32 v{VF+4+i}, 0")
    k(f"s_waitcnt vmcnt({(R2-2)*2}) lgkmcnt(0)")
    k("s_barrier")
    k.add([rd("K", 0, 0), rd("K", 0, 1)])
    k("s_waitcnt lgkmcnt(0)")
    k.add([m32(S, KF, Q, C), m32(S, KF + 4, Q + 4, S)])
    k.add([rd("K", 1, 0), rd("K", 1, 1), rd("V", 0, 0)])
    k("s_waitcnt lgkmcnt(0)")
    stamp(k, 1)
    if unrolled:
        for i in range(64):
            iteration(i)
    else:
        k("s_mov_b32 s30, 4")
        k("K2_LOOP:")
        for i in range(16):
            iteration(i)
        k("s_sub_u32 s30, s30, 1")
        k("s_cmp_lg_u32 s30, 0")
        k("s_cbranch_scc1 K2_LOOP")
    stamp(k, 2)
    k("s_waitcnt vmcnt(0) lgkmcnt(0)")
    k.add([m32(O, VF + 4, P + 4, O), m16(L, ONES, P + 4)])
    k(f"v_rcp_f32 v4, v{L}")
    tmp = S
    for i in range(16):
        k(f"v_mul_f32 v{tmp+i}, v{O+i}, v4")
    for i in range(8):
        k(f"v_cvt_pk_bf16_f32 v{P+i}, v{tmp+2*i}, v{tmp+2*i+1}")
    for c in range(2):
        k(f"buffer_store_dwordx4 v[{P+4*c}:{P+4*c+3}], v{VQ}, s[8:11], s22 offen offset:{512*c}")
    k("s_cmp_lg_u32 s28, 0")
    k("s_cbranch_scc1 K2_END")
    k("v_mov_b32 v5, 0")
    for i in range(16):
        k(f"v_fmac_f32 v5, 0, v{O+i}")
    k(f"v_mov_b32 v6, {f2h(2.0**-60)}")
    k(f"v_mov_b32 v7, {f2h(2.0**60)}")
    k(f"v_cmp_nle_f32 vcc, v6, v{L}")
    k(f"v_cmp_nle_f32 s[32:33], v{L}, v7")
    k("v_cmp_u_f32 s[34:35], v5, v5")
    k("s_or_b64 vcc, vcc, s[32:33]")
    k("s_or_b64 vcc, vcc, s[34:35]")
    k(f"v_mov_b32 v6, {FLAG}")
    k("s_cbranch_vccz K2_NOFLAG")
    k("v_mov_b32 v7, 1")
    k("ds_write_b32 v6, v7")
    k("K2_NOFLAG:")
    k("s_waitcnt lgkmcnt(0)")
    k("s_barrier")
    k("ds_read_b32 v7, v6")
    k("s_waitcnt lgkmcnt(0)")
    k("v_readfirstlane_b32 s31, v7")
    k("s_cmp_eq_u32 s31, 0")
    k("s_cbranch_scc1 K2_END")
    k("s_mov_b32 s28, 1")
    k("s_mov_b32 s29, s23")
    k("s_mov_b32 s30, 64")
    k("v_mov_b32 v4, 0xff800000")
    k("K2_MAXLOOP:")
    for p in range(2):
        k(f"buffer_load_dwordx4 v[{KF+4*p}:{KF+4*p+3}], v{VK}, s[8:11], s29 offen offset:{512*p}")
    k("s_add_u32 s29, s29, 4096")
    k("s_waitcnt vmcnt(0)")
    k(f"v_mfma_f32_32x32x16_bf16 v[{S}:{S+15}], v[{KF}:{KF+3}], v[{Q}:{Q+3}], 0")
    k.add([m32(S, KF + 4, Q + 4, S)])
    for i in range(8):
        k(f"v_max3_f32 v4, v4, v{S+2*i}, v{S+2*i+1}")
    k("s_sub_u32 s30, s30, 1")
    k("s_cmp_lg_u32 s30, 0")
    k("s_cbranch_scc1 K2_MAXLOOP")
    k("v_mov_b32 v5, v4")
    k("v_permlane32_swap_b32 v4, v5")
    k("v_max_f32 v4, v4, v5")
    for i in range(16):
        k(f"v_sub_f32 v{C+i}, 0, v4")
    k("s_branch K2_RUN")
    k("K2_END:")
    stamp_end(k, 2)
    k("s_endpgm")
    if check:
        idx = [i for i, x in enumerate(k.ins) if x.text.startswith("s_cmp_lg_u32 s28")][0]
        check_trace(k.ins[:idx], "K2")
        return None
    k.fix_hazards()
    return dict(name="attn_kernel", grid=256, block=512, lds=LDS2, kern=k, vgpr=NV, sgpr=96)
```

```python
from common import *
from gemm import T, Loop
from k_prep import wave_lane

SLOT = 49152
R35 = 3


def _common(name, which, R, unrolled):
    k = Kern(name)
    stamp_begin(k)
    E = f"{which}_END"
    k("s_cmp_ge_u32 s2, 256")
    k(f"s_cbranch_scc1 {E}")
    wave_lane(k)
    if which == "K3":
        load_srds(k, [(4, KA_WO, 1024 * 1024 * 2), (8, KA_WS, WS_SIZE), (12, KA_X, 2048 * 1024 * 2)])
        nst, WB = 8, WS_O
    else:
        load_srds(k, [(4, KA_WD, 3584 * 1024 * 2), (8, KA_WS, WS_SIZE), (12, KA_OUT, 2048 * 1024 * 2)])
        nst, WB = 28, WS_HH
    stamp(k, 3)
    k("s_and_b32 s16, s2, 7")
    k("s_lshr_b32 s17, s2, 3")
    k("s_lshr_b32 s18, s16, 1")
    k("s_lshl_b32 s18, s18, 2")
    k("s_and_b32 s19, s17, 3")
    k("s_add_u32 s18, s18, s19")
    k("s_and_b32 s19, s16, 1")
    k("s_lshl_b32 s19, s19, 3")
    k("s_lshr_b32 s20, s17, 2")
    k("s_add_u32 s19, s19, s20")
    k("s_lshl_b32 s24, s3, 7")
    k("s_lshl_b32 s25, s18, 3")
    k("s_add_u32 s24, s24, s25")
    k("s_lshl_b32 s24, s24, 10")
    k(f"s_add_u32 s24, s24, {WB}")
    k("s_lshl_b32 s25, s3, 16")
    k("s_lshl_b32 s26, s19, 7")
    k("s_add_u32 s25, s25, s26")
    k("s_lshl_b32 s26, s3, 13")
    k("s_lshl_b32 s27, s3, 12")
    k("s_add_u32 s27, s27, 32768")
    VL, VA = 1, 2
    k(f"v_lshlrev_b32 v{VL}, 4, v0")
    k("v_lshrrev_b32 v6, 3, v0")
    k("v_lshlrev_b32 v6, 11, v6")
    k("v_bfe_u32 v8, v0, 1, 2")
    k("v_and_b32 v9, 1, v0")
    k("v_lshl_add_u32 v6, v9, 4, v6")
    for p in range(4):
        if which == "K3":
            k("v_bfe_u32 v7, v0, 4, 2")
        else:
            k("v_bfe_u32 v7, v0, 4, 1")
            if p & 1:
                k("v_or_b32 v7, 2, v7")
        k("v_xor_b32 v7, v7, v8")
        k("v_lshl_add_u32 v7, v7, 5, v6")
        k(f"v_add_u32 v{VA+p}, {p*(8*2048-1024)}, v7")
    VB = 6
    VT = VB + R
    k("s_lshl_b32 s29, s3, 11")
    k(f"v_add_u32 v{VB}, s29, v{VL}")
    for sl in range(1, R):
        k(f"v_add_u32 v{VB+sl}, {sl*SLOT}, v{VB}")
    t0, t1, t2, t3 = 28, 29, 30, 31
    assert VT + 4 * R <= 28
    k(f"v_lshrrev_b32 v{t0}, 4, v0")
    k(f"v_bfe_u32 v{t2}, v0, 2, 2")
    if which == "K3":
        k(f"v_lshrrev_b32 v{t1}, 1, v{t0}")
        k(f"v_lshlrev_b32 v{t1}, 11, v{t1}")
        k(f"v_and_b32 v{t3}, 1, v{t0}")
        k(f"v_lshl_add_u32 v{t1}, v{t3}, 9, v{t1}")
    else:
        k(f"v_lshlrev_b32 v{t1}, 10, v{t0}")
    k(f"v_lshl_add_u32 v{t1}, v{t2}, 7, v{t1}")
    k(f"v_and_b32 v{t3}, 3, v0")
    k(f"v_lshl_add_u32 v{t1}, v{t3}, 3, v{t1}")
    k(f"v_add_u32 v{t1}, 32768, v{t1}")
    k(f"v_lshrrev_b32 v{t2}, 1, v{t2}")
    k(f"v_and_b32 v{t0}, 1, v{t0}")
    k(f"v_lshl_add_u32 v{t2}, v{t0}, 1, v{t2}")
    for f4 in range(4):
        k(f"v_xor_b32 v{t3}, {f4}, v{t2}")
        k(f"v_lshl_add_u32 v{VT+f4}, v{t3}, 5, v{t1}")
        for sl in range(1, R):
            k(f"v_add_u32 v{VT+4*sl+f4}, {sl*SLOT}, v{VT+f4}")
    ACC = 32
    FA = ACC + 32
    FB = FA + 32
    RES = FB + 16
    NV = RES + 16
    hs = 1024 if which == "K3" else 512

    def acc(t, mt):
        return ACC + (t * 2 + mt) * 4

    def reads(slot, ks, buf, st):
        out = []
        for mt in range(2):
            r = FB + buf * 8 + mt * 4
            out.append(T(f"ds_read_b128 v[{r}:{r+3}], v{VB+slot} offset:{ks*8192 + mt*1024}", use=(("B", slot), st)))
        for t in range(4):
            for h in range(2):
                r = FA + buf * 16 + t * 4 + 2 * h
                out.append(T(f"ds_read_b64_tr_b16 v[{r}:{r+1}], v{VT+4*slot+t} offset:{ks*4096 + h*hs}",
                             use=(("A", slot), st)))
        return out

    def mfmas(buf):
        out = []
        for t in range(4):
            for mt in range(2):
                a = FA + buf * 16 + t * 4
                b = FB + buf * 8 + mt * 4
                c = acc(t, mt)
                out.append(T(f"v_mfma_f32_16x16x32_bf16 v[{c}:{c+3}], v[{a}:{a+3}], v[{b}:{b+3}], v[{c}:{c+3}]"))
        return out

    def dma(slot, st):
        gs = []
        for hb in range(2):
            g = [T(f"s_add_u32 m0, s26, {slot*SLOT + hb*4096}")]
            if hb:
                g.append(T("s_add_u32 s28, s24, 4096"))
            for i in range(4):
                g.append(T(f"buffer_load_dwordx4 v{VL}, s[8:11], s{28 if hb else 24} offen offset:{1024*i} lds",
                           fill=(("B", slot), st)))
            if hb:
                g.append(T(f"s_add_u32 s24, s24, {4*128*1024}", bump=True))
            gs.append(g)
        g = [T(f"s_add_u32 m0, s27, {slot*SLOT}")]
        for p in range(4):
            g.append(T(f"buffer_load_dwordx4 v{VA+p}, s[4:7], s25 offen offset:{1024*p} lds", fill=(("A", slot), st)))
        g.append(T(f"s_add_u32 s25, s25, {128*2048}", bump=True))
        gs.append(g)
        return gs

    L = Loop(which.lower(), nst, 4, R, 12, reads, mfmas, dma, 30,
             rpos=lambda i, nr, nm: (i * nm) // nr,
             dpos=lambda i, nd, nm: 3 + 2 * i)
    k("s_lshl_b32 s32, s18, 3")
    k("s_lshl_b32 s33, s3, 1")
    k("s_add_u32 s32, s32, s33")
    k("s_lshl_b32 s34, s32, 15")
    k("s_lshl_b32 s35, s19, 7")
    k("s_add_u32 s34, s34, s35")
    k("s_lshl_b32 s35, s19, 8")
    k("s_add_u32 s35, s35, s32")
    k("s_lshl_b32 s35, s35, 10")
    k(f"s_add_u32 s35, s35, {WS_H}")
    k("s_add_u32 s36, s35, 0x20000")
    VR = t0
    return k, L, dict(VL=VL, ACC=ACC, FA=FA, FB=FB, RES=RES, NV=NV, acc=acc, VR=VR, t1=t1, t2=t2, t3=t3, E=E, R=R)


def kernel_K3(R=R35, unrolled=False, check=False):
    k, L, c = _common("wo_kernel", "K3", R, unrolled)
    VL, ACC, FA, RES, acc, VR = c["VL"], c["ACC"], c["FA"], c["RES"], c["acc"], c["VR"]
    k(f"v_and_b32 v{VR}, 15, v0")
    k(f"v_lshlrev_b32 v{VR}, 11, v{VR}")
    k(f"v_lshrrev_b32 v{c['t1']}, 4, v0")
    k(f"v_lshl_add_u32 v{VR}, v{c['t1']}, 3, v{VR}")
    k("s_add_u32 s37, s34, 0x8000")
    for mt in range(2):
        for t in range(4):
            r = RES + (mt * 4 + t) * 2
            k(f"buffer_load_dwordx2 v[{r}:{r+1}], v{VR}, s[12:15], s{37 if mt else 34} offen offset:{32*t}")
    L.prologue_dma(k)
    stamp(k, 4)
    for i in range(32):
        k(f"v_mov_b32 v{ACC+i}, 0")
    L.prologue_sync(k)
    stamp(k, 1)
    L.emit(k, unrolled=unrolled)
    stamp(k, 2)
    X = FA
    PK = FA + 16
    RB = FA + 32
    SM = [4, 5]
    M2 = [6, 7]
    for mt in range(2):
        for t in range(4):
            a = acc(t, mt)
            r = RES + (mt * 4 + t) * 2
            k(f"v_lshlrev_b32 v{X+4*t}, 16, v{r}")
            k(f"v_and_b32 v{X+4*t+1}, 0xffff0000, v{r}")
            k(f"v_lshlrev_b32 v{X+4*t+2}, 16, v{r+1}")
            k(f"v_and_b32 v{X+4*t+3}, 0xffff0000, v{r+1}")
            for q in range(4):
                k(f"v_add_f32 v{X+4*t+q}, v{X+4*t+q}, v{a+q}")
            k(f"v_cvt_pk_bf16_f32 v{PK+2*t}, v{X+4*t}, v{X+4*t+1}")
            k(f"v_cvt_pk_bf16_f32 v{PK+2*t+1}, v{X+4*t+2}, v{X+4*t+3}")
        k(f"buffer_store_dwordx4 v[{PK}:{PK+3}], v{VL}, s[8:11], s35 offen offset:{1024*mt}")
        k(f"buffer_store_dwordx4 v[{PK+4}:{PK+7}], v{VL}, s[8:11], s36 offen offset:{1024*mt}")
        for i in range(8):
            k(f"v_lshlrev_b32 v{RB+2*i}, 16, v{PK+i}")
            k(f"v_and_b32 v{RB+2*i+1}, 0xffff0000, v{PK+i}")
        for q in range(4):
            k(f"v_add_f32 v{X+q}, v{RB+q}, v{RB+4+q}")
            k(f"v_add_f32 v{X+4+q}, v{RB+8+q}, v{RB+12+q}")
        for q in range(4):
            k(f"v_add_f32 v{X+q}, v{X+q}, v{X+4+q}")
        k(f"v_add_f32 v{X}, v{X}, v{X+1}")
        k(f"v_add_f32 v{X+2}, v{X+2}, v{X+3}")
        k(f"v_add_f32 v{SM[mt]}, v{X}, v{X+2}")
        allreduce_rows(k, SM[mt], X)
        k(f"v_mul_f32 v{X}, {f2h(1.0/64)}, v{SM[mt]}")
        for i in range(16):
            k(f"v_sub_f32 v{RB+i}, v{RB+i}, v{X}")
        for q in range(4):
            k(f"v_mul_f32 v{X+4+q}, v{RB+q}, v{RB+q}")
        for i in range(4, 16):
            k(f"v_fmac_f32 v{X+4+(i&3)}, v{RB+i}, v{RB+i}")
        k(f"v_add_f32 v{X+4}, v{X+4}, v{X+5}")
        k(f"v_add_f32 v{X+6}, v{X+6}, v{X+7}")
        k(f"v_add_f32 v{M2[mt]}, v{X+4}, v{X+6}")
        allreduce_rows(k, M2[mt], X)
    k("v_bfe_u32 v8, v0, 4, 1")
    k("v_cmp_ne_u32 vcc, 0, v8")
    k(f"v_cndmask_b32 v10, v{SM[0]}, v{SM[1]}, vcc")
    k(f"v_cndmask_b32 v11, v{M2[0]}, v{M2[1]}, vcc")
    k("v_and_b32 v9, 15, v0")
    k("v_lshl_add_u32 v9, v8, 4, v9")
    k("v_lshlrev_b32 v9, 3, v9")
    k("s_lshl_b32 s38, s19, 14")
    k("s_lshl_b32 s39, s32, 7")
    k("s_add_u32 s38, s38, s39")
    k(f"s_add_u32 s38, s38, {WS_STAT}")
    k("buffer_store_dwordx2 v[10:11], v9, s[8:11], s38 offen")
    k(f"{c['E']}:")
    stamp_end(k, 3)
    k("s_endpgm")
    if check:
        check_trace(k.ins, "K3")
        return None
    k.fix_hazards()
    return dict(name="wo_kernel", grid=256, block=256, lds=R * SLOT, kern=k, vgpr=c["NV"], sgpr=96)


def kernel_K5(R=R35, unrolled=False, check=False):
    k, L, c = _common("down_kernel", "K5", R, unrolled)
    VL, ACC, FA, RES, acc, VR = c["VL"], c["ACC"], c["FA"], c["RES"], c["acc"], c["VR"]
    for mt in range(2):
        for sb in range(2):
            r = RES + (mt * 2 + sb) * 4
            k(f"buffer_load_dwordx4 v[{r}:{r+3}], v{VL}, s[8:11], s{36 if sb else 35} offen offset:{1024*mt}")
    k(f"v_and_b32 v{VR}, 15, v0")
    k(f"v_lshlrev_b32 v{VR}, 11, v{VR}")
    k(f"v_bfe_u32 v{c['t1']}, v0, 4, 1")
    k(f"v_lshl_add_u32 v{VR}, v{c['t1']}, 5, v{VR}")
    k(f"v_bfe_u32 v{c['t1']}, v0, 5, 1")
    k(f"v_lshl_add_u32 v{VR}, v{c['t1']}, 4, v{VR}")
    k("s_add_u32 s37, s34, 0x8000")
    L.prologue_dma(k)
    stamp(k, 4)
    for i in range(32):
        k(f"v_mov_b32 v{ACC+i}, 0")
    L.prologue_sync(k)
    stamp(k, 1)
    L.emit(k, unrolled=unrolled)
    stamp(k, 2)
    X = FA
    PK = FA + 16
    for mt in range(2):
        for sb in range(2):
            r = RES + (mt * 2 + sb) * 4
            o = PK + (mt * 2 + sb) * 4
            for tt in range(2):
                t = 2 * sb + tt
                a = acc(t, mt)
                x = X + 4 * tt
                k(f"v_lshlrev_b32 v{x}, 16, v{r+2*tt}")
                k(f"v_and_b32 v{x+1}, 0xffff0000, v{r+2*tt}")
                k(f"v_lshlrev_b32 v{x+2}, 16, v{r+2*tt+1}")
                k(f"v_and_b32 v{x+3}, 0xffff0000, v{r+2*tt+1}")
                for q in range(4):
                    k(f"v_add_f32 v{x+q}, v{x+q}, v{a+q}")
            k(f"v_cvt_pk_bf16_f32 v{o}, v{X}, v{X+1}")
            k(f"v_cvt_pk_bf16_f32 v{o+1}, v{X+2}, v{X+3}")
            k(f"v_cvt_pk_bf16_f32 v{o+2}, v{X+4}, v{X+5}")
            k(f"v_cvt_pk_bf16_f32 v{o+3}, v{X+6}, v{X+7}")
            k(f"v_permlane16_swap_b32 v{o}, v{o+2}")
            k(f"v_permlane16_swap_b32 v{o+1}, v{o+3}")
            k(f"buffer_store_dwordx4 v[{o}:{o+3}], v{VR}, s[12:15], s{37 if mt else 34} offen offset:{64*sb}")
    k(f"{c['E']}:")
    stamp_end(k, 5)
    k("s_endpgm")
    if check:
        check_trace(k.ins, "K5")
        return None
    k.fix_hazards()
    return dict(name="down_kernel", grid=256, block=256, lds=R * SLOT, kern=k, vgpr=c["NV"], sgpr=96)
```

```python
from common import *
from gemm import T, Loop
from k_prep import wave_lane
import math

SLOT4 = 30720
R4 = 4
CSL = R4 * SLOT4
LDS4 = CSL + 2048


def kernel_K4(unrolled=False, check=False):
    R = R4
    k = Kern("gu_kernel")
    stamp_begin(k)
    k("s_cmp_ge_u32 s2, 256")
    k("s_cbranch_scc1 K4_END")
    k("v_lshlrev_b32 v14, 2, v0")
    wave_lane(k)
    load_srds(k, [(8, KA_WS, WS_SIZE)])
    stamp(k, 3)
    k("s_and_b32 s16, s2, 7")
    k("s_lshr_b32 s17, s2, 3")
    k("s_and_b32 s18, s16, 1")
    k("s_lshl_b32 s18, s18, 2")
    k("s_and_b32 s19, s17, 3")
    k("s_add_u32 s18, s18, s19")
    k("s_lshr_b32 s19, s16, 1")
    k("s_lshl_b32 s19, s19, 3")
    k("s_lshr_b32 s20, s17, 2")
    k("s_add_u32 s19, s19, s20")
    ACC, FA, FB = 16, 128, 240
    VL, VL2, VB0, VB1 = 1, 2, 3, 4
    P1 = [6, 10]
    P2 = [8, 12]
    k("v_lshrrev_b32 v5, 4, v0")
    k("v_lshlrev_b32 v5, 16, v5")
    k("v_and_b32 v15, 15, v0")
    k("v_lshl_add_u32 v5, v15, 3, v5")
    k("s_lshl_b32 s21, s18, 11")
    k("s_lshl_b32 s22, s3, 8")
    k("s_add_u32 s21, s21, s22")
    k(f"s_add_u32 s21, s21, {WS_STAT}")
    ST = FA
    for i in range(4):
        for mt in range(2):
            r = ST + (mt * 4 + i) * 2
            k(f"buffer_load_dwordx2 v[{r}:{r+1}], v5, s[8:11], s21 offen offset:{128*mt}")
        if i < 3:
            k("s_add_u32 s21, s21, 16384")
    CSR = FA + 16
    k(f"s_mul_i32 s22, s19, {14*64}")
    k(f"s_add_u32 s22, s22, {WS_CS}")
    for kp in range(4):
        k(f"buffer_load_dword v{CSR+kp}, v14, s[8:11], s22 offen")
        if kp < 3:
            k(f"s_add_u32 s22, s22, {448*64}")
    k("s_lshl_b32 s24, s18, 4")
    k("s_lshl_b32 s25, s3, 2")
    k("s_add_u32 s24, s24, s25")
    k("s_lshl_b32 s24, s24, 10")
    k(f"s_add_u32 s24, s24, {WS_H}")
    k("s_lshl_b32 s26, s3, 12")
    k("s_sub_u32 s27, s25, 16")
    k("s_min_u32 s27, s27, 10")
    k("s_mul_i32 s28, s19, 448")
    k("s_add_u32 s28, s28, s27")
    k("s_lshl_b32 s28, s28, 10")
    k(f"s_add_u32 s28, s28, {WS_WGU}")
    k("s_lshl_b32 s27, s27, 10")
    k("s_add_u32 s27, s27, 16384")
    k(f"s_movk_i32 s31, {14*1024}")
    k("s_cmp_lt_u32 s3, 4")
    k("s_cselect_b32 s24, s24, s28")
    k("s_cselect_b32 s26, s26, s27")
    k(f"s_cselect_b32 s25, {128*1024}, s31")
    k(f"v_lshlrev_b32 v{VL}, 4, v0")
    k(f"v_add_u32 v{VL2}, {2*SLOT4}, v{VL}")
    k("s_lshl_b32 s29, s3, 11")
    k(f"v_add_u32 v{VB0}, s29, v{VL}")
    k(f"v_add_u32 v{VB1}, {2*SLOT4}, v{VB0}")

    def acc(q, mt):
        return ACC + (q * 2 + mt) * 4

    def reads(slot, ks, buf, st):
        out = []
        so = (slot & 1) * SLOT4
        vb = VB1 if slot >= 2 else VB0
        va = VL2 if slot >= 2 else VL
        for mt in range(2):
            r = FB + buf * 8 + mt * 4
            out.append(T(f"ds_read_b128 v[{r}:{r+3}], v{vb} offset:{so + mt*1024}", use=(slot, st)))
        for q in range(14):
            r = FA + buf * 56 + q * 4
            out.append(T(f"ds_read_b128 v[{r}:{r+3}], v{va} offset:{so + 16384 + q*1024}", use=(slot, st)))
        return out

    def mfmas(buf):
        out = []
        for q in range(14):
            for mt in range(2):
                a = FA + buf * 56 + q * 4
                b = FB + buf * 8 + mt * 4
                c = acc(q, mt)
                out.append(T(f"v_mfma_f32_16x16x32_bf16 v[{c}:{c+3}], v[{a}:{a+3}], v[{b}:{b+3}], v[{c}:{c+3}]"))
        return out

    def dma(slot, st):
        g = [T(f"s_add_u32 m0, s26, {slot*SLOT4}")]
        for i in range(4):
            g.append(T(f"buffer_load_dwordx4 v{VL}, s[8:11], s24 offen offset:{1024*i} lds", fill=(slot, st)))
        g.append(T("s_add_u32 s24, s24, s25", bump=True))
        return [g]

    L = Loop("k4", 32, 1, R, 4, reads, mfmas, dma, 30,
             rpos=lambda i, nr, nm: i,
             dpos=lambda i, nd, nm: 18 + 2 * i)
    L.prologue_dma(k)
    stamp(k, 4)
    k(f"s_waitcnt vmcnt({4*(R-1) + 4})")
    kap = 2.0 * math.sqrt(2.0 / math.pi) * math.log2(math.e)
    TM = FA + 24
    for mt in range(2):
        r = ST + mt * 8
        k(f"v_add_f32 v{TM}, v{r}, v{r+2}")
        k(f"v_add_f32 v{TM+1}, v{r+4}, v{r+6}")
        k(f"v_add_f32 v{TM}, v{TM}, v{TM+1}")
        allreduce_rows(k, TM, TM + 1)
        k(f"v_mul_f32 v{TM}, {f2h(1.0/1024)}, v{TM}")
        k(f"v_add_f32 v{TM+2}, v{r+1}, v{r+3}")
        k(f"v_add_f32 v{TM+3}, v{r+5}, v{r+7}")
        k(f"v_add_f32 v{TM+2}, v{TM+2}, v{TM+3}")
        for i in range(4):
            k(f"v_mul_f32 v{TM+4+i}, {f2h(1.0/64)}, v{r+2*i}")
            k(f"v_sub_f32 v{TM+4+i}, v{TM+4+i}, v{TM}")
        k(f"v_mul_f32 v{TM+3}, v{TM+4}, v{TM+4}")
        for i in range(1, 4):
            k(f"v_fmac_f32 v{TM+3}, v{TM+4+i}, v{TM+4+i}")
        k(f"v_fmac_f32 v{TM+2}, {f2h(64.0)}, v{TM+3}")
        allreduce_rows(k, TM + 2, TM + 1)
        k(f"v_mov_b32 v{P2[mt]+1}, {f2h(1e-5)}")
        k(f"v_fmac_f32 v{P2[mt]+1}, {f2h(1.0/1024)}, v{TM+2}")
        k(f"v_rsq_f32 v{TM+3}, v{P2[mt]+1}")
        k(f"v_sub_f32 v{P1[mt]}, 0, v{TM}")
        k(f"v_mul_f32 v{P1[mt]+1}, {f2h(-kap)}, v{TM+3}")
        k(f"v_mul_f32 v{TM+4}, v{TM+3}, v{TM+3}")
        k(f"v_mul_f32 v{TM+4}, v{TM+4}, v{P1[mt]+1}")
        k(f"v_mul_f32 v{P2[mt]}, {f2h(0.044715)}, v{TM+4}")
    k(f"s_waitcnt vmcnt({4*(R-1)})")
    k(f"v_add_f32 v{CSR}, v{CSR}, v{CSR+1}")
    k(f"v_add_f32 v{CSR+2}, v{CSR+2}, v{CSR+3}")
    k(f"v_add_f32 v{CSR}, v{CSR}, v{CSR+2}")
    k(f"v_add_u32 v14, {CSL}, v14")
    k(f"ds_write_b32 v14, v{CSR}")
    for i in range(112):
        k(f"v_mov_b32 v{ACC+i}, 0")
    k("s_waitcnt lgkmcnt(0)")
    L.prologue_sync(k)
    stamp(k, 1)
    L.emit(k, unrolled=unrolled)
    stamp(k, 2)
    CS = FA
    k("v_lshrrev_b32 v14, 4, v0")
    k("v_lshlrev_b32 v14, 4, v14")
    k(f"v_add_u32 v14, {CSL}, v14")
    for q in range(14):
        k(f"ds_read_b128 v[{CS+4*q}:{CS+4*q+3}], v14 offset:{64*q}")
    k("s_lshr_b32 s32, s19, 1")
    k("s_mul_i32 s32, s32, 7")
    k("s_and_b32 s33, s19, 1")
    k("s_lshl_b32 s34, s33, 2")
    k("s_add_u32 s34, s34, s32")
    k("s_add_u32 s32, s32, 3")
    k("s_lshl_b32 s35, s18, 4")
    k("s_lshl_b32 s36, s3, 1")
    k("s_add_u32 s35, s35, s36")
    k("s_lshl_b32 s34, s34, 7")
    k("s_add_u32 s34, s34, s35")
    k("s_lshl_b32 s34, s34, 10")
    k(f"s_add_u32 s34, s34, {WS_HH}")
    k("s_lshl_b32 s32, s32, 7")
    k("s_add_u32 s32, s32, s35")
    k("s_lshl_b32 s32, s32, 10")
    k("s_lshl_b32 s33, s33, 3")
    k("s_add_u32 s32, s32, s33")
    k(f"s_add_u32 s32, s32, {WS_HH}")
    OUT = [FA + 56, FA + 72]
    TMP = FA + 88
    BC_LO = "op_sel_hi:[1,0,1]"

    def pr(r):
        return f"v[{r}:{r+1}]"

    def stream(q, mt, tb):
        a = acc(q, mt)
        c = CS + 4 * q
        Tg, Tu, X = tb, tb + 2, tb + 4
        p1, p2 = P1[mt], P2[mt]
        return [
            f"v_pk_fma_f32 {pr(Tg)}, {pr(c)}, {pr(p1)}, {pr(a)} op_sel_hi:[1,0,1]",
            f"v_pk_fma_f32 {pr(Tu)}, {pr(c+2)}, {pr(p1)}, {pr(a+2)} op_sel_hi:[1,0,1]",
            f"v_pk_mul_f32 {pr(X)}, {pr(Tg)}, {pr(Tg)}",
            f"v_pk_fma_f32 {pr(X)}, {pr(X)}, {pr(p2)}, {pr(p1)} op_sel:[0,0,1] op_sel_hi:[1,0,1]",
            f"v_pk_mul_f32 {pr(X)}, {pr(X)}, {pr(Tg)}",
            f"v_exp_f32 v{X}, v{X}",
            f"v_exp_f32 v{X+1}, v{X+1}",
            f"v_pk_mul_f32 {pr(Tg)}, {pr(Tg)}, {pr(Tu)}",
            f"v_pk_fma_f32 {pr(X)}, {pr(X)}, {pr(p2)}, {pr(p2)} op_sel:[0,1,1] op_sel_hi:[1,1,1]",
            f"v_rcp_f32 v{X}, v{X}",
            f"v_rcp_f32 v{X+1}, v{X+1}",
            None,
            f"v_pk_mul_f32 {pr(Tg)}, {pr(Tg)}, {pr(X)}",
            f"v_cvt_pk_bf16_f32 v{OUT[mt]+q}, v{Tg}, v{Tg+1}",
        ]

    k("s_waitcnt lgkmcnt(0)")
    for q0 in range(0, 14, 2):
        strs = [stream(q0 + dq, mt, TMP + 6 * (2 * dq + mt)) for dq in range(2) for mt in range(2)]
        for i in range(len(strs[0])):
            for sx in strs:
                if sx[i]:
                    k(sx[i])
        done = q0 + 2
        if done in (4, 8, 12):
            b = done // 4 - 1
            for mt in range(2):
                o = OUT[mt] + 4 * b
                k(f"buffer_store_dwordx4 v[{o}:{o+3}], v{VL}, s[8:11], s34 offen offset:{1024*mt}")
            if done < 12:
                k("s_add_u32 s34, s34, 0x20000")
        if done == 14:
            for mt in range(2):
                o = OUT[mt] + 12
                k(f"buffer_store_dwordx2 v[{o}:{o+1}], v{VL}, s[8:11], s32 offen offset:{1024*mt}")
    k("K4_END:")
    stamp_end(k, 4)
    k("s_endpgm")
    if check:
        check_trace(k.ins, "K4")
        return None
    k.fix_hazards()
    return dict(name="gu_kernel", grid=256, block=512, lds=LDS4, kern=k, vgpr=256, sgpr=96)
```

```python
import sys
from common import *
import k_prep,k1,k2,k35,k4
base = [k_prep.kernel_P(), k1.kernel_K1(), k2.kernel_K2(), k35.kernel_K3(), k4.kernel_K4(), k35.kernel_K5()]
open("v_base.s","w").write(build_file(base))
un = [k_prep.kernel_P(), k1.kernel_K1(unrolled=True), k2.kernel_K2(unrolled=True), k35.kernel_K3(), k4.kernel_K4(unrolled=True), k35.kernel_K5(unrolled=True)]
open("v_unroll.s","w").write(build_file(un))
for kd in un: print(kd["name"], kd["kern"].count())
for kd in base:
    for x in kd["kern"].ins:
        if x.op.startswith("buffer_store"): x.text += " sc1"
open("v_sc1.s","w").write(build_file(base))
```

```python
from common import *
from gemm import T
from k_prep import wave_lane
from k2pack import emit_pack_waves, PBASE

R2 = 4
LDS2 = 65536 + 256 + 65536
FLAG = 65536

ORDER = ("W M1 e0 e1 SYNC rK0 e2 e3 W M5 e4 e5 rV1 c0 c1 e6 W M2 e7 e8 rK1 c2 c3 e9 "
         "M6 e10 e11 W M3 e12 e13 rV0 e14 e15 M4 c4 c5 c6 c7").split()


def kernel_K2(unrolled=False, check=False, order=ORDER, extra_setup=None):
    k = Kern("attn_kernel")
    stamp_begin(k)
    k("s_cmp_ge_u32 s2, 256")
    k("s_cbranch_scc1 K2_END")
    wave_lane(k)
    k("s_cmp_ge_u32 s3, 8")
    k("s_cbranch_scc1 K2_PACK")
    load_srds(k, [(8, KA_WS, WS_SIZE)])
    stamp(k, 3)
    k("s_and_b32 s16, s2, 7")
    k("s_lshr_b32 s17, s2, 3")
    k("s_lshl_b32 s18, s16, 2")
    k("s_and_b32 s19, s17, 3")
    k("s_add_u32 s18, s18, s19")
    k("s_lshr_b32 s19, s17, 2")
    k("s_lshl_b32 s20, s18, 7")
    k("s_lshl_b32 s21, s19, 4")
    k("s_add_u32 s20, s20, s21")
    k("s_lshl_b32 s21, s3, 1")
    k("s_add_u32 s20, s20, s21")
    k("s_lshl_b32 s20, s20, 10")
    k(f"s_add_u32 s21, s20, {WS_Q}")
    k(f"s_add_u32 s22, s20, {WS_O}")
    k("s_lshl_b32 s23, s18, 18")
    k(f"s_add_u32 s23, s23, {WS_KV}")
    k("s_lshl_b32 s24, s3, 11")
    k("s_add_u32 s27, s23, s24")
    k("s_mov_b32 s28, 0")
    VL, VQ, VK = 1, 2, 3
    k(f"v_lshlrev_b32 v{VL}, 4, v0")
    k("v_bfe_u32 v4, v0, 4, 1")
    k("v_lshlrev_b32 v4, 10, v4")
    k("v_lshrrev_b32 v5, 5, v0")
    k("v_lshl_add_u32 v4, v5, 8, v4")
    k("v_and_b32 v6, 15, v0")
    k(f"v_lshl_add_u32 v{VQ}, v6, 4, v4")
    k("v_bfe_u32 v4, v0, 3, 1")
    k("v_lshlrev_b32 v4, 10, v4")
    k("v_lshl_add_u32 v4, v5, 8, v4")
    k("v_bfe_u32 v6, v0, 4, 1")
    k("v_lshl_add_u32 v4, v6, 7, v4")
    k("v_and_b32 v6, 7, v0")
    k(f"v_lshl_add_u32 v{VK}, v6, 4, v4")
    Q, KF, VF, P, ONES, L = 8, 16, 24, 32, 40, 44
    O, C, S = 48, 64, 80
    NV = S + 32
    for p in range(2):
        k(f"buffer_load_dwordx4 v[{Q+4*p}:{Q+4*p+3}], v{VQ}, s[8:11], s21 offen offset:{512*p}")
    k("v_bfe_u32 v4, v0, 2, 1")
    k("v_bfe_u32 v5, v0, 4, 1")
    k("v_xor_b32 v4, v4, v5")
    k("v_and_b32 v5, 3, v0")
    k("v_or_b32 v4, v4, v5")
    k("v_cmp_eq_u32 vcc, 0, v4")
    k("v_mov_b32 v5, 0x3f803f80")
    for d in range(4):
        k(f"v_cndmask_b32 v{ONES+d}, 0, v5, vcc")
    for i in range(16):
        k(f"v_mov_b32 v{C+i}, 0")
    k(f"v_mov_b32 v6, {FLAG}")
    k("v_mov_b32 v7, 0")
    k("ds_write_b32 v6, v7")

    def dma(st):
        slot = st % R2
        return [T("s_add_u32 s26, s27, s25"),
                T(f"s_add_u32 m0, s24, {slot*16384}"),
                T(f"buffer_load_dwordx4 v{VL}, s[8:11], s26 offen lds", fill=(slot, st)),
                T(f"buffer_load_dwordx4 v{VL}, s[8:11], s26 offen offset:1024 lds", fill=(slot, st)),
                T("s_add_u32 s25, s25, 16384"),
                T("s_and_b32 s25, s25, 0x3ffff")]

    def rd(kind, tile, half):
        st, tl = tile >> 2, tile & 3
        slot = st % R2
        if kind == "K":
            r = KF + 4 * half
            return T(f"ds_read_b128 v[{r}:{r+3}], v{VK} offset:{slot*16384 + tl*4096 + 512*half}", use=(slot, st))
        r = VF + 4 * half
        return T(f"ds_read_b128 v[{r}:{r+3}], v{VQ} offset:{slot*16384 + tl*4096 + 2048 + 512*half}", use=(slot, st))

    def m32(d, a, b, c):
        return T(f"v_mfma_f32_32x32x16_bf16 v[{d}:{d+15}], v[{a}:{a+3}], v[{b}:{b+3}], v[{c}:{c+15}]")

    def m16(d, a, b):
        return T(f"v_mfma_f32_16x16x32_bf16 v[{d}:{d+3}], v[{a}:{a+3}], v[{b}:{b+3}], v[{d}:{d+3}]")

    def iteration(i):
        cur = S + 16 * (i & 1)
        nxt = S + 16 * ((i + 1) & 1)
        for tok in order:
            if tok == "W":
                k("s_waitcnt lgkmcnt(3)")
            elif tok == "M1":
                k.add([m32(nxt, KF, Q, C)])
            elif tok == "M2":
                k.add([m32(nxt, KF + 4, Q + 4, nxt)])
            elif tok == "M3":
                k.add([m32(O, VF, P, O)])
            elif tok == "M4":
                k.add([m16(L, ONES, P)])
            elif tok == "M5":
                k.add([m32(O, VF + 4, P + 4, O)])
            elif tok == "M6":
                k.add([m16(L, ONES, P + 4)])
            elif tok == "SYNC":
                if i % 4 == 2:
                    k(f"s_waitcnt vmcnt({(R2-3)*2})")
                    k("s_barrier")
                    k.add(dma((i >> 2) + R2 - 1))
            elif tok == "rK0":
                k.add([rd("K", i + 2, 0)])
            elif tok == "rK1":
                k.add([rd("K", i + 2, 1)])
            elif tok == "rV0":
                k.add([rd("V", i + 1, 0)])
            elif tok == "rV1":
                k.add([rd("V", i, 1)])
            elif tok[0] == "e":
                j = int(tok[1:])
                k(f"v_exp_f32 v{cur+j}, v{cur+j}")
            elif tok[0] == "c":
                j = int(tok[1:])
                k(f"v_cvt_pk_bf16_f32 v{P+j}, v{cur+2*j}, v{cur+2*j+1}")
            else:
                raise ValueError(tok)

    k("K2_RUN:")
    k("s_mov_b32 s25, 0")
    for st in range(R2 - 1):
        k.add(dma(st))
    stamp(k, 4)
    for i in range(16):
        k(f"v_mov_b32 v{O+i}, 0")
    for i in range(4):
        k(f"v_mov_b32 v{L+i}, 0")
        k(f"v_mov_b32 v{P+4+i}, 0")
        k(f"v_mov_b32 v{VF+4+i}, 0")
    k(f"s_waitcnt vmcnt({(R2-2)*2}) lgkmcnt(0)")
    k("s_barrier")
    k.add([rd("K", 0, 0), rd("K", 0, 1)])
    k("s_waitcnt lgkmcnt(0)")
    k.add([m32(S, KF, Q, C), m32(S, KF + 4, Q + 4, S)])
    k.add([rd("K", 1, 0), rd("K", 1, 1), rd("V", 0, 0)])
    k("s_waitcnt lgkmcnt(0)")
    stamp(k, 1)
    if unrolled:
        for i in range(64):
            iteration(i)
    else:
        k("s_mov_b32 s30, 4")
        k("K2_LOOP:")
        for i in range(16):
            iteration(i)
        k("s_sub_u32 s30, s30, 1")
        k("s_cmp_lg_u32 s30, 0")
        k("s_cbranch_scc1 K2_LOOP")
    stamp(k, 2)
    k("s_waitcnt vmcnt(0) lgkmcnt(0)")
    k.add([m32(O, VF + 4, P + 4, O), m16(L, ONES, P + 4)])
    k(f"v_rcp_f32 v4, v{L}")
    tmp = S
    for i in range(16):
        k(f"v_mul_f32 v{tmp+i}, v{O+i}, v4")
    for i in range(8):
        k(f"v_cvt_pk_bf16_f32 v{P+i}, v{tmp+2*i}, v{tmp+2*i+1}")
    for c in range(2):
        k(f"buffer_store_dwordx4 v[{P+4*c}:{P+4*c+3}], v{VQ}, s[8:11], s22 offen offset:{512*c}")
    k("s_cmp_lg_u32 s28, 0")
    k("s_cbranch_scc1 K2_END")
    k("v_mov_b32 v5, 0")
    for i in range(16):
        k(f"v_fmac_f32 v5, 0, v{O+i}")
    k(f"v_mov_b32 v6, {f2h(2.0**-60)}")
    k(f"v_mov_b32 v7, {f2h(2.0**60)}")
    k(f"v_cmp_nle_f32 vcc, v6, v{L}")
    k(f"v_cmp_nle_f32 s[32:33], v{L}, v7")
    k("v_cmp_u_f32 s[34:35], v5, v5")
    k("s_or_b64 vcc, vcc, s[32:33]")
    k("s_or_b64 vcc, vcc, s[34:35]")
    k(f"v_mov_b32 v6, {FLAG}")
    k("s_cbranch_vccz K2_NOFLAG")
    k("v_mov_b32 v7, 1")
    k("ds_write_b32 v6, v7")
    k("K2_NOFLAG:")
    k("s_waitcnt lgkmcnt(0)")
    k("s_barrier")
    k("ds_read_b32 v7, v6")
    k("s_waitcnt lgkmcnt(0)")
    k("v_readfirstlane_b32 s31, v7")
    k("s_cmp_eq_u32 s31, 0")
    k("s_cbranch_scc1 K2_END")
    k("s_mov_b32 s28, 1")
    k("s_mov_b32 s29, s23")
    k("s_mov_b32 s30, 64")
    k("v_mov_b32 v4, 0xff800000")
    k("K2_MAXLOOP:")
    for p in range(2):
        k(f"buffer_load_dwordx4 v[{KF+4*p}:{KF+4*p+3}], v{VK}, s[8:11], s29 offen offset:{512*p}")
    k("s_add_u32 s29, s29, 4096")
    k("s_waitcnt vmcnt(0)")
    k(f"v_mfma_f32_32x32x16_bf16 v[{S}:{S+15}], v[{KF}:{KF+3}], v[{Q}:{Q+3}], 0")
    k.add([m32(S, KF + 4, Q + 4, S)])
    for i in range(8):
        k(f"v_max3_f32 v4, v4, v{S+2*i}, v{S+2*i+1}")
    k("s_sub_u32 s30, s30, 1")
    k("s_cmp_lg_u32 s30, 0")
    k("s_cbranch_scc1 K2_MAXLOOP")
    k("v_mov_b32 v5, v4")
    k("v_permlane32_swap_b32 v4, v5")
    k("v_max_f32 v4, v4, v5")
    for i in range(16):
        k(f"v_sub_f32 v{C+i}, 0, v4")
    k("s_branch K2_RUN")
    k("K2_END:")
    stamp_end(k, 2)
    k("s_endpgm")
    emit_pack_waves(k)
    if check:
        idx = [i for i, x in enumerate(k.ins) if x.text.startswith("s_cmp_lg_u32 s28")][0]
        check_trace(k.ins[:idx], "K2")
        return None
    k.fix_hazards()
    return dict(name="attn_kernel", grid=256, block=768, lds=LDS2, kern=k, vgpr=NV, sgpr=96)
```

```python
from common import *

PBASE = 65536 + 256


def emit_pack_waves(k, nbar_total=18):
    k("K2_PACK:")
    load_srds(k, [(8, KA_WS, WS_SIZE), (12, KA_WG, 1024 * 3584 * 2), (16, KA_WU, 1024 * 3584 * 2),
                  (20, KA_WD, 3584 * 1024 * 2), (24, KA_WO, 1024 * 1024 * 2)])
    k("s_sub_u32 s3, s3, 8")
    k("s_lshr_b32 s28, s2, 2")
    k("s_and_b32 s29, s3, 1")
    k("s_lshl_b32 s30, s28, 1")
    k("s_add_u32 s30, s30, s29")
    k("s_and_b32 s31, s2, 3")
    k("s_lshl_b32 s31, s31, 1")
    k("s_lshr_b32 s32, s3, 1")
    k("s_add_u32 s31, s31, s32")
    k("s_lshl_b32 s32, s31, 2")
    k("v_lshrrev_b32 v1, 2, v0")
    k("s_movk_i32 s33, 7168")
    k("v_mul_lo_u32 v1, v1, s33")
    k("v_bfe_u32 v2, v0, 4, 1")
    k("v_lshlrev_b32 v2, 1, v2")
    k("v_and_b32 v3, 3, v0")
    k("v_xor_b32 v2, v2, v3")
    k("v_lshl_add_u32 v1, v2, 4, v1")
    k(f"v_add_u32 v2, {16*7168-1024}, v1")
    k(f"s_mul_i32 s34, s32, {32*7168}")
    k("s_lshl_b32 s33, s30, 6")
    k("s_add_u32 s34, s34, s33")
    k("s_lshl_b32 s35, s3, 14")
    k(f"s_add_u32 s35, s35, {PBASE}")
    k("s_mul_i32 s37, s30, 9363")
    k("s_lshr_b32 s37, s37, 16")
    k("s_mul_i32 s38, s37, 7")
    k("s_sub_u32 s38, s30, s38")
    k("s_lshl_b32 s39, s37, 1")
    k("s_cmp_ge_u32 s38, 4")
    k("s_cselect_b32 s40, 1, 0")
    k("s_add_u32 s40, s39, s40")
    k("s_cmp_ge_u32 s38, 4")
    k("s_cselect_b32 s41, 4, 0")
    k("s_sub_u32 s41, s38, s41")
    k("s_lshl_b32 s41, s41, 2")
    k("s_add_u32 s42, s41, 2")
    k("s_mov_b32 s43, s40")
    k("s_cmp_eq_u32 s38, 3")
    k("s_cselect_b32 s42, 12, s42")
    k("s_add_u32 s44, s39, 1")
    k("s_cmp_eq_u32 s38, 3")
    k("s_cselect_b32 s43, s44, s43")
    k("s_mul_i32 s45, s32, 14")
    for (d, cc, qq) in ((46, 40, 41), (47, 43, 42)):
        k(f"s_mul_i32 s44, s{cc}, 448")
        k(f"s_add_u32 s44, s44, s{qq}")
        k("s_add_u32 s44, s44, s45")
        k("s_lshl_b32 s44, s44, 10")
        k(f"s_add_u32 s{d}, s44, {WS_WGU}")
    k("s_mul_i32 s45, s31, 448")
    for (d, cc, qq) in ((48, 40, 41), (49, 43, 42)):
        k(f"s_mul_i32 s44, s{cc}, 14")
        k(f"s_add_u32 s44, s44, s{qq}")
        k("s_add_u32 s44, s44, s45")
        k("s_lshl_b32 s44, s44, 6")
        k(f"s_add_u32 s{d}, s44, {WS_CS}")
    k("v_lshrrev_b32 v3, 2, v0")
    k("v_lshlrev_b32 v3, 6, v3")
    k("v_bfe_u32 v4, v0, 4, 1")
    k("v_lshlrev_b32 v4, 1, v4")
    k("v_bfe_u32 v5, v0, 1, 1")
    k("v_xor_b32 v4, v4, v5")
    k("v_lshl_add_u32 v3, v4, 4, v3")
    k("v_and_b32 v4, 1, v0")
    k("v_lshl_add_u32 v3, v4, 3, v3")
    k("v_xor_b32 v4, 32, v3")
    k("v_add_u32 v3, s35, v3")
    k("v_add_u32 v4, s35, v4")
    k("v_lshlrev_b32 v5, 4, v0")
    k("v_and_b32 v6, 15, v0")
    k("v_cmp_eq_u32 vcc, 0, v6")
    k("v_lshrrev_b32 v6, 4, v0")
    k("v_lshlrev_b32 v6, 4, v6")
    k("v_mov_b32 v7, 0x7fff0000")
    k("v_cndmask_b32 v6, v7, v6, vcc")
    for d in range(4):
        k(f"v_mov_b32 v{8+d}, 0x3f803f80")
    CS = 12
    for i in range(16):
        k(f"v_mov_b32 v{CS+i}, 0")
    FR = 28
    PF = 44
    k("s_mul_i32 s50, s2, 224")
    k("s_mul_i32 s51, s3, 56")
    k("s_add_u32 s50, s50, s51")
    k(f"v_add_u32 v{PF}, s50, v0")
    k(f"v_lshlrev_b32 v{PF}, 7, v{PF}")
    k("s_lshr_b32 s50, s2, 3")
    k("s_lshl_b32 s50, s50, 5")
    k("s_lshl_b32 s51, s3, 3")
    k("s_add_u32 s50, s50, s51")
    k(f"v_lshrrev_b32 v{PF+1}, 3, v0")
    k(f"v_add_u32 v{PF+1}, s50, v{PF+1}")
    k(f"v_lshlrev_b32 v{PF+1}, 11, v{PF+1}")
    k(f"v_and_b32 v{PF+2}, 7, v0")
    k(f"v_lshl_add_u32 v{PF+1}, v{PF+2}, 7, v{PF+1}")
    k("s_and_b32 s50, s2, 1")
    k("s_lshl_b32 s50, s50, 10")
    k("s_cmp_lt_u32 s2, 224")
    k("s_cselect_b32 s52, 1, 0")

    nlab = [0]

    def guarded(fn):
        lab = f"K2_PK_{nlab[0]}"
        nlab[0] += 1
        k("s_cmp_eq_u32 s52, 0")
        k(f"s_cbranch_scc1 {lab}")
        fn()
        k(f"{lab}:")

    def issue(sb):
        def f():
            for mat in range(2):
                k(f"s_add_u32 m0, s35, {sb*4096 + mat*2048}")
                srd = 12 + 4 * mat
                k(f"buffer_load_dwordx4 v1, s[{srd}:{srd+3}], s34 offen lds")
                k(f"buffer_load_dwordx4 v2, s[{srd}:{srd+3}], s34 offen offset:1024 lds")
            k(f"s_add_u32 s34, s34, {32*7168}")
        guarded(f)

    def process(sb, vm, last=False):
        def f():
            k(f"s_waitcnt vmcnt({vm})")
            for e in range(2):
                for mat in range(2):
                    r = FR + 4 * (2 * e + mat)
                    for h in range(2):
                        k(f"ds_read_b64_tr_b16 v[{r+2*h}:{r+2*h+1}], v{3+e} offset:{sb*4096 + mat*2048 + h*1024}")
            for e in range(2):
                k(f"s_waitcnt lgkmcnt({4*(1-e)})")
                for mat in range(2):
                    r = FR + 4 * (2 * e + mat)
                    k(f"buffer_store_dwordx4 v[{r}:{r+3}], v5, s[8:11], s{46+e} offen offset:{1024*mat}")
                for mat in range(2):
                    r = FR + 4 * (2 * e + mat)
                    c = CS + 4 * (2 * e + mat)
                    k(f"v_mfma_f32_16x16x32_bf16 v[{c}:{c+3}], v[{r}:{r+3}], v[8:11], v[{c}:{c+3}]")
            k(f"s_add_u32 s46, s46, {14*1024}")
            k(f"s_add_u32 s47, s47, {14*1024}")
            if last:
                for e in range(2):
                    for mat in range(2):
                        c = CS + 4 * (2 * e + mat)
                        k(f"buffer_store_dwordx4 v[{c}:{c+3}], v6, s[8:11], s{48+e} offen offset:{64*mat}")
        guarded(f)

    after = {
        1: lambda: issue(0),
        3: lambda: issue(1),
        4: lambda: process(0, 4),
        5: lambda: issue(2),
        6: lambda: process(1, 8),
        7: lambda: issue(3),
        8: lambda: process(2, 8),
        10: lambda: process(3, 4, last=True),
        11: lambda: k(f"buffer_load_dword v{PF+3}, v{PF}, s[20:23], 0 offen"),
        13: lambda: k(f"buffer_load_dword v{PF+4}, v{PF+1}, s[24:27], s50 offen"),
    }
    for b in range(16):
        k("s_barrier")
        if b in after:
            after[b]()
    k("s_endpgm")
```

```python
from common import *
from gemm import T, Loop
from k_prep import wave_lane

SLOT = 49152
R35 = 3


def _common(name, which, R, unrolled):
    k = Kern(name)
    stamp_begin(k)
    E = f"{which}_END"
    k("s_cmp_ge_u32 s2, 256")
    k(f"s_cbranch_scc1 {E}")
    wave_lane(k)
    if which == "K3":
        load_srds(k, [(4, KA_WO, 1024 * 1024 * 2), (8, KA_WS, WS_SIZE), (12, KA_X, 2048 * 1024 * 2)])
        nst, WB = 8, WS_O
    else:
        load_srds(k, [(4, KA_WD, 3584 * 1024 * 2), (8, KA_WS, WS_SIZE), (12, KA_OUT, 2048 * 1024 * 2)])
        nst, WB = 28, WS_HH
    stamp(k, 3)
    k("s_and_b32 s16, s2, 7")
    k("s_lshr_b32 s17, s2, 3")
    k("s_lshr_b32 s18, s16, 1")
    k("s_lshl_b32 s18, s18, 2")
    k("s_and_b32 s19, s17, 3")
    k("s_add_u32 s18, s18, s19")
    k("s_and_b32 s19, s16, 1")
    k("s_lshl_b32 s19, s19, 3")
    k("s_lshr_b32 s20, s17, 2")
    k("s_add_u32 s19, s19, s20")
    k("s_lshl_b32 s24, s3, 7")
    k("s_lshl_b32 s25, s18, 3")
    k("s_add_u32 s24, s24, s25")
    k("s_lshl_b32 s24, s24, 10")
    k(f"s_add_u32 s24, s24, {WB}")
    k("s_lshl_b32 s25, s3, 16")
    k("s_lshl_b32 s26, s19, 7")
    k("s_add_u32 s25, s25, s26")
    k("s_lshl_b32 s26, s3, 13")
    k("s_lshl_b32 s27, s3, 12")
    k("s_add_u32 s27, s27, 32768")
    VL, VA = 1, 2
    k(f"v_lshlrev_b32 v{VL}, 4, v0")
    k("v_lshrrev_b32 v6, 3, v0")
    k("v_lshlrev_b32 v6, 11, v6")
    k("v_bfe_u32 v8, v0, 1, 2")
    k("v_and_b32 v9, 1, v0")
    k("v_lshl_add_u32 v6, v9, 4, v6")
    for p in range(4):
        k("v_bfe_u32 v7, v0, 4, 2")
        k("v_xor_b32 v7, v7, v8")
        k("v_lshl_add_u32 v7, v7, 5, v6")
        k(f"v_add_u32 v{VA+p}, {p*(8*2048-1024)}, v7")
    VB = 6
    VT = VB + R
    k("s_lshl_b32 s29, s3, 11")
    k(f"v_add_u32 v{VB}, s29, v{VL}")
    for sl in range(1, R):
        k(f"v_add_u32 v{VB+sl}, {sl*SLOT}, v{VB}")
    t0, t1, t2, t3 = 28, 29, 30, 31
    assert VT + 4 * R <= 28
    k(f"v_lshrrev_b32 v{t0}, 4, v0")
    k(f"v_bfe_u32 v{t2}, v0, 2, 2")
    if which == "K3":
        k(f"v_lshrrev_b32 v{t1}, 1, v{t0}")
        k(f"v_lshlrev_b32 v{t1}, 11, v{t1}")
        k(f"v_and_b32 v{t3}, 1, v{t0}")
        k(f"v_lshl_add_u32 v{t1}, v{t3}, 9, v{t1}")
    else:
        k(f"v_lshlrev_b32 v{t1}, 9, v{t0}")
    k(f"v_lshl_add_u32 v{t1}, v{t2}, 7, v{t1}")
    k(f"v_and_b32 v{t3}, 3, v0")
    k(f"v_lshl_add_u32 v{t1}, v{t3}, 3, v{t1}")
    k(f"v_add_u32 v{t1}, 32768, v{t1}")
    k(f"v_lshrrev_b32 v{t2}, 1, v{t2}")
    k(f"v_and_b32 v{t0}, 1, v{t0}")
    k(f"v_lshl_add_u32 v{t2}, v{t0}, 1, v{t2}")
    for f4 in range(4):
        k(f"v_xor_b32 v{t3}, {f4}, v{t2}")
        k(f"v_lshl_add_u32 v{VT+f4}, v{t3}, 5, v{t1}")
        for sl in range(1, R):
            k(f"v_add_u32 v{VT+4*sl+f4}, {sl*SLOT}, v{VT+f4}")
    ACC = 32
    FA = ACC + 32
    FB = FA + 32
    RES = FB + 16
    NV = RES + 16
    hs = 1024 if which == "K3" else 2048

    def acc(t, mt):
        return ACC + (t * 2 + mt) * 4

    def reads(slot, ks, buf, st):
        out = []
        for mt in range(2):
            r = FB + buf * 8 + mt * 4
            out.append(T(f"ds_read_b128 v[{r}:{r+3}], v{VB+slot} offset:{ks*8192 + mt*1024}", use=(("B", slot), st)))
        for t in range(4):
            for h in range(2):
                r = FA + buf * 16 + t * 4 + 2 * h
                out.append(T(f"ds_read_b64_tr_b16 v[{r}:{r+1}], v{VT+4*slot+t} offset:{ks*4096 + h*hs}",
                             use=(("A", slot), st)))
        return out

    def mfmas(buf):
        out = []
        for t in range(4):
            for mt in range(2):
                a = FA + buf * 16 + t * 4
                b = FB + buf * 8 + mt * 4
                c = acc(t, mt)
                out.append(T(f"v_mfma_f32_16x16x32_bf16 v[{c}:{c+3}], v[{a}:{a+3}], v[{b}:{b+3}], v[{c}:{c+3}]"))
        return out

    def dma(slot, st):
        gs = []
        for hb in range(2):
            g = [T(f"s_add_u32 m0, s26, {slot*SLOT + hb*4096}")]
            if hb:
                g.append(T("s_add_u32 s28, s24, 4096"))
            for i in range(4):
                g.append(T(f"buffer_load_dwordx4 v{VL}, s[8:11], s{28 if hb else 24} offen offset:{1024*i} lds",
                           fill=(("B", slot), st)))
            if hb:
                g.append(T(f"s_add_u32 s24, s24, {4*128*1024}", bump=True))
            gs.append(g)
        g = [T(f"s_add_u32 m0, s27, {slot*SLOT}")]
        for p in range(4):
            g.append(T(f"buffer_load_dwordx4 v{VA+p}, s[4:7], s25 offen offset:{1024*p} lds", fill=(("A", slot), st)))
        g.append(T(f"s_add_u32 s25, s25, {128*2048}", bump=True))
        gs.append(g)
        return gs

    L = Loop(which.lower(), nst, 4, R, 12, reads, mfmas, dma, 30,
             rpos=lambda i, nr, nm: (i * nm) // nr,
             dpos=lambda i, nd, nm: 3 + 2 * i)
    k("s_lshl_b32 s32, s18, 3")
    k("s_lshl_b32 s33, s3, 1")
    k("s_add_u32 s32, s32, s33")
    k("s_lshl_b32 s34, s32, 15")
    k("s_lshl_b32 s35, s19, 7")
    k("s_add_u32 s34, s34, s35")
    k("s_lshl_b32 s35, s19, 8")
    k("s_add_u32 s35, s35, s32")
    k("s_lshl_b32 s35, s35, 10")
    k(f"s_add_u32 s35, s35, {WS_H}")
    k("s_add_u32 s36, s35, 0x20000")
    VR = t0
    return k, L, dict(VL=VL, ACC=ACC, FA=FA, FB=FB, RES=RES, NV=NV, acc=acc, VR=VR, t1=t1, t2=t2, t3=t3, E=E, R=R)


def kernel_K3(R=R35, unrolled=False, check=False):
    k, L, c = _common("wo_kernel", "K3", R, unrolled)
    VL, ACC, FA, RES, acc, VR = c["VL"], c["ACC"], c["FA"], c["RES"], c["acc"], c["VR"]
    k(f"v_and_b32 v{VR}, 15, v0")
    k(f"v_lshlrev_b32 v{VR}, 11, v{VR}")
    k(f"v_lshrrev_b32 v{c['t1']}, 4, v0")
    k(f"v_lshl_add_u32 v{VR}, v{c['t1']}, 3, v{VR}")
    k("s_add_u32 s37, s34, 0x8000")
    for mt in range(2):
        for t in range(4):
            r = RES + (mt * 4 + t) * 2
            k(f"buffer_load_dwordx2 v[{r}:{r+1}], v{VR}, s[12:15], s{37 if mt else 34} offen offset:{32*t}")
    L.prologue_dma(k)
    stamp(k, 4)
    for i in range(32):
        k(f"v_mov_b32 v{ACC+i}, 0")
    L.prologue_sync(k)
    stamp(k, 1)
    L.emit(k, unrolled=unrolled)
    stamp(k, 2)
    X = FA
    PK = FA + 16
    RB = FA + 32
    SM = [4, 5]
    M2 = [6, 7]
    for mt in range(2):
        for t in range(4):
            a = acc(t, mt)
            r = RES + (mt * 4 + t) * 2
            k(f"v_lshlrev_b32 v{X+4*t}, 16, v{r}")
            k(f"v_and_b32 v{X+4*t+1}, 0xffff0000, v{r}")
            k(f"v_lshlrev_b32 v{X+4*t+2}, 16, v{r+1}")
            k(f"v_and_b32 v{X+4*t+3}, 0xffff0000, v{r+1}")
            for q in range(4):
                k(f"v_add_f32 v{X+4*t+q}, v{X+4*t+q}, v{a+q}")
            k(f"v_cvt_pk_bf16_f32 v{PK+2*t}, v{X+4*t}, v{X+4*t+1}")
            k(f"v_cvt_pk_bf16_f32 v{PK+2*t+1}, v{X+4*t+2}, v{X+4*t+3}")
        k(f"buffer_store_dwordx4 v[{PK}:{PK+3}], v{VL}, s[8:11], s35 offen offset:{1024*mt}")
        k(f"buffer_store_dwordx4 v[{PK+4}:{PK+7}], v{VL}, s[8:11], s36 offen offset:{1024*mt}")
        for i in range(8):
            k(f"v_lshlrev_b32 v{RB+2*i}, 16, v{PK+i}")
            k(f"v_and_b32 v{RB+2*i+1}, 0xffff0000, v{PK+i}")
        for q in range(4):
            k(f"v_add_f32 v{X+q}, v{RB+q}, v{RB+4+q}")
            k(f"v_add_f32 v{X+4+q}, v{RB+8+q}, v{RB+12+q}")
        for q in range(4):
            k(f"v_add_f32 v{X+q}, v{X+q}, v{X+4+q}")
        k(f"v_add_f32 v{X}, v{X}, v{X+1}")
        k(f"v_add_f32 v{X+2}, v{X+2}, v{X+3}")
        k(f"v_add_f32 v{SM[mt]}, v{X}, v{X+2}")
        allreduce_rows(k, SM[mt], X)
        k(f"v_mul_f32 v{X}, {f2h(1.0/64)}, v{SM[mt]}")
        for i in range(16):
            k(f"v_sub_f32 v{RB+i}, v{RB+i}, v{X}")
        for q in range(4):
            k(f"v_mul_f32 v{X+4+q}, v{RB+q}, v{RB+q}")
        for i in range(4, 16):
            k(f"v_fmac_f32 v{X+4+(i&3)}, v{RB+i}, v{RB+i}")
        k(f"v_add_f32 v{X+4}, v{X+4}, v{X+5}")
        k(f"v_add_f32 v{X+6}, v{X+6}, v{X+7}")
        k(f"v_add_f32 v{M2[mt]}, v{X+4}, v{X+6}")
        allreduce_rows(k, M2[mt], X)
    k("v_bfe_u32 v8, v0, 4, 1")
    k("v_cmp_ne_u32 vcc, 0, v8")
    k(f"v_cndmask_b32 v10, v{SM[0]}, v{SM[1]}, vcc")
    k(f"v_cndmask_b32 v11, v{M2[0]}, v{M2[1]}, vcc")
    k("v_and_b32 v9, 15, v0")
    k("v_lshl_add_u32 v9, v8, 4, v9")
    k("v_lshlrev_b32 v9, 3, v9")
    k("s_lshl_b32 s38, s19, 14")
    k("s_lshl_b32 s39, s32, 7")
    k("s_add_u32 s38, s38, s39")
    k(f"s_add_u32 s38, s38, {WS_STAT}")
    k("buffer_store_dwordx2 v[10:11], v9, s[8:11], s38 offen")
    k(f"{c['E']}:")
    stamp_end(k, 3)
    k("s_endpgm")
    if check:
        check_trace(k.ins, "K3")
        return None
    k.fix_hazards()
    return dict(name="wo_kernel", grid=256, block=256, lds=R * SLOT, kern=k, vgpr=c["NV"], sgpr=96)


def kernel_K5(R=R35, unrolled=False, check=False):
    k, L, c = _common("down_kernel", "K5", R, unrolled)
    VL, ACC, FA, RES, acc, VR = c["VL"], c["ACC"], c["FA"], c["RES"], c["acc"], c["VR"]
    for mt in range(2):
        for sb in range(2):
            r = RES + (mt * 2 + sb) * 4
            k(f"buffer_load_dwordx4 v[{r}:{r+3}], v{VL}, s[8:11], s{36 if sb else 35} offen offset:{1024*mt}")
    k(f"v_and_b32 v{VR}, 15, v0")
    k(f"v_lshlrev_b32 v{VR}, 11, v{VR}")
    k(f"v_bfe_u32 v{c['t1']}, v0, 4, 1")
    k(f"v_lshl_add_u32 v{VR}, v{c['t1']}, 5, v{VR}")
    k(f"v_bfe_u32 v{c['t1']}, v0, 5, 1")
    k(f"v_lshl_add_u32 v{VR}, v{c['t1']}, 4, v{VR}")
    k("s_add_u32 s37, s34, 0x8000")
    L.prologue_dma(k)
    stamp(k, 4)
    for i in range(32):
        k(f"v_mov_b32 v{ACC+i}, 0")
    L.prologue_sync(k)
    stamp(k, 1)
    L.emit(k, unrolled=unrolled)
    stamp(k, 2)
    X = FA
    PK = FA + 16
    for mt in range(2):
        for sb in range(2):
            r = RES + (mt * 2 + sb) * 4
            o = PK + (mt * 2 + sb) * 4
            for tt in range(2):
                t = 2 * sb + tt
                a = acc(t, mt)
                x = X + 4 * tt
                k(f"v_lshlrev_b32 v{x}, 16, v{r+2*tt}")
                k(f"v_and_b32 v{x+1}, 0xffff0000, v{r+2*tt}")
                k(f"v_lshlrev_b32 v{x+2}, 16, v{r+2*tt+1}")
                k(f"v_and_b32 v{x+3}, 0xffff0000, v{r+2*tt+1}")
                for q in range(4):
                    k(f"v_add_f32 v{x+q}, v{x+q}, v{a+q}")
            k(f"v_cvt_pk_bf16_f32 v{o}, v{X}, v{X+1}")
            k(f"v_cvt_pk_bf16_f32 v{o+1}, v{X+2}, v{X+3}")
            k(f"v_cvt_pk_bf16_f32 v{o+2}, v{X+4}, v{X+5}")
            k(f"v_cvt_pk_bf16_f32 v{o+3}, v{X+6}, v{X+7}")
            k(f"v_permlane16_swap_b32 v{o}, v{o+2}")
            k(f"v_permlane16_swap_b32 v{o+1}, v{o+3}")
            k(f"buffer_store_dwordx4 v[{o}:{o+3}], v{VR}, s[12:15], s{37 if mt else 34} offen offset:{64*sb}")
    k(f"{c['E']}:")
    stamp_end(k, 5)
    k("s_endpgm")
    if check:
        check_trace(k.ins, "K5")
        return None
    k.fix_hazards()
    return dict(name="down_kernel", grid=256, block=256, lds=R * SLOT, kern=k, vgpr=c["NV"], sgpr=96)
```

```python
from common import *
from gemm import T, Loop
from k_prep import wave_lane
import math

SLOT4 = 30720
R4 = 4
CSL = R4 * SLOT4
LDS4 = CSL + 2048


def kernel_K4(unrolled=False, check=False):
    R = R4
    k = Kern("gu_kernel")
    stamp_begin(k)
    k("s_cmp_ge_u32 s2, 256")
    k("s_cbranch_scc1 K4_END")
    k("v_lshlrev_b32 v14, 2, v0")
    wave_lane(k)
    load_srds(k, [(8, KA_WS, WS_SIZE)])
    stamp(k, 3)
    k("s_and_b32 s16, s2, 7")
    k("s_lshr_b32 s17, s2, 3")
    k("s_and_b32 s18, s16, 1")
    k("s_lshl_b32 s18, s18, 2")
    k("s_and_b32 s19, s17, 3")
    k("s_add_u32 s18, s18, s19")
    k("s_lshr_b32 s19, s16, 1")
    k("s_lshl_b32 s19, s19, 3")
    k("s_lshr_b32 s20, s17, 2")
    k("s_add_u32 s19, s19, s20")
    ACC, FA, FB = 16, 128, 240
    VL, VL2, VB0, VB1 = 1, 2, 3, 4
    P1 = [6, 10]
    P2 = [8, 12]
    k("v_lshrrev_b32 v5, 4, v0")
    k("v_lshlrev_b32 v5, 16, v5")
    k("v_and_b32 v15, 15, v0")
    k("v_lshl_add_u32 v5, v15, 3, v5")
    k("s_lshl_b32 s21, s18, 11")
    k("s_lshl_b32 s22, s3, 8")
    k("s_add_u32 s21, s21, s22")
    k(f"s_add_u32 s21, s21, {WS_STAT}")
    ST = FA
    for i in range(4):
        for mt in range(2):
            r = ST + (mt * 4 + i) * 2
            k(f"buffer_load_dwordx2 v[{r}:{r+1}], v5, s[8:11], s21 offen offset:{128*mt}")
        if i < 3:
            k("s_add_u32 s21, s21, 16384")
    CSR = FA + 16
    k(f"s_mul_i32 s22, s19, {14*64}")
    k(f"s_add_u32 s22, s22, {WS_CS}")
    for kp in range(8):
        k(f"buffer_load_dword v{CSR+kp}, v14, s[8:11], s22 offen")
        if kp < 7:
            k(f"s_add_u32 s22, s22, {448*64}")
    k("s_lshl_b32 s24, s18, 4")
    k("s_lshl_b32 s25, s3, 2")
    k("s_add_u32 s24, s24, s25")
    k("s_lshl_b32 s24, s24, 10")
    k(f"s_add_u32 s24, s24, {WS_H}")
    k("s_lshl_b32 s26, s3, 12")
    k("s_sub_u32 s27, s25, 16")
    k("s_min_u32 s27, s27, 10")
    k("s_mul_i32 s28, s19, 448")
    k("s_add_u32 s28, s28, s27")
    k("s_lshl_b32 s28, s28, 10")
    k(f"s_add_u32 s28, s28, {WS_WGU}")
    k("s_lshl_b32 s27, s27, 10")
    k("s_add_u32 s27, s27, 16384")
    k(f"s_movk_i32 s31, {14*1024}")
    k("s_cmp_lt_u32 s3, 4")
    k("s_cselect_b32 s24, s24, s28")
    k("s_cselect_b32 s26, s26, s27")
    k(f"s_cselect_b32 s25, {128*1024}, s31")
    k(f"v_lshlrev_b32 v{VL}, 4, v0")
    k(f"v_add_u32 v{VL2}, {2*SLOT4}, v{VL}")
    k("s_lshl_b32 s29, s3, 11")
    k(f"v_add_u32 v{VB0}, s29, v{VL}")
    k(f"v_add_u32 v{VB1}, {2*SLOT4}, v{VB0}")

    def acc(q, mt):
        return ACC + (q * 2 + mt) * 4

    def reads(slot, ks, buf, st):
        out = []
        so = (slot & 1) * SLOT4
        vb = VB1 if slot >= 2 else VB0
        va = VL2 if slot >= 2 else VL
        for mt in range(2):
            r = FB + buf * 8 + mt * 4
            out.append(T(f"ds_read_b128 v[{r}:{r+3}], v{vb} offset:{so + mt*1024}", use=(slot, st)))
        for q in range(14):
            r = FA + buf * 56 + q * 4
            out.append(T(f"ds_read_b128 v[{r}:{r+3}], v{va} offset:{so + 16384 + q*1024}", use=(slot, st)))
        return out

    def mfmas(buf):
        out = []
        for q in range(14):
            for mt in range(2):
                a = FA + buf * 56 + q * 4
                b = FB + buf * 8 + mt * 4
                c = acc(q, mt)
                out.append(T(f"v_mfma_f32_16x16x32_bf16 v[{c}:{c+3}], v[{a}:{a+3}], v[{b}:{b+3}], v[{c}:{c+3}]"))
        return out

    def dma(slot, st):
        g = [T(f"s_add_u32 m0, s26, {slot*SLOT4}")]
        for i in range(4):
            g.append(T(f"buffer_load_dwordx4 v{VL}, s[8:11], s24 offen offset:{1024*i} lds", fill=(slot, st)))
        g.append(T("s_add_u32 s24, s24, s25", bump=True))
        return [g]

    L = Loop("k4", 32, 1, R, 4, reads, mfmas, dma, 30,
             rpos=lambda i, nr, nm: i,
             dpos=lambda i, nd, nm: 18 + 2 * i)
    L.prologue_dma(k)
    stamp(k, 4)
    k(f"s_waitcnt vmcnt({4*(R-1) + 8})")
    kap = 2.0 * math.sqrt(2.0 / math.pi) * math.log2(math.e)
    TM = FA + 32
    for mt in range(2):
        r = ST + mt * 8
        k(f"v_add_f32 v{TM}, v{r}, v{r+2}")
        k(f"v_add_f32 v{TM+1}, v{r+4}, v{r+6}")
        k(f"v_add_f32 v{TM}, v{TM}, v{TM+1}")
        allreduce_rows(k, TM, TM + 1)
        k(f"v_mul_f32 v{TM}, {f2h(1.0/1024)}, v{TM}")
        k(f"v_add_f32 v{TM+2}, v{r+1}, v{r+3}")
        k(f"v_add_f32 v{TM+3}, v{r+5}, v{r+7}")
        k(f"v_add_f32 v{TM+2}, v{TM+2}, v{TM+3}")
        for i in range(4):
            k(f"v_mul_f32 v{TM+4+i}, {f2h(1.0/64)}, v{r+2*i}")
            k(f"v_sub_f32 v{TM+4+i}, v{TM+4+i}, v{TM}")
        k(f"v_mul_f32 v{TM+3}, v{TM+4}, v{TM+4}")
        for i in range(1, 4):
            k(f"v_fmac_f32 v{TM+3}, v{TM+4+i}, v{TM+4+i}")
        k(f"v_fmac_f32 v{TM+2}, {f2h(64.0)}, v{TM+3}")
        allreduce_rows(k, TM + 2, TM + 1)
        k(f"v_mov_b32 v{P2[mt]+1}, {f2h(1e-5)}")
        k(f"v_fmac_f32 v{P2[mt]+1}, {f2h(1.0/1024)}, v{TM+2}")
        k(f"v_rsq_f32 v{TM+3}, v{P2[mt]+1}")
        k(f"v_sub_f32 v{P1[mt]}, 0, v{TM}")
        k(f"v_mul_f32 v{P1[mt]+1}, {f2h(-kap)}, v{TM+3}")
        k(f"v_mul_f32 v{TM+4}, v{TM+3}, v{TM+3}")
        k(f"v_mul_f32 v{TM+4}, v{TM+4}, v{P1[mt]+1}")
        k(f"v_mul_f32 v{P2[mt]}, {f2h(0.044715)}, v{TM+4}")
    k(f"s_waitcnt vmcnt({4*(R-1)})")
    for i in range(4):
        k(f"v_add_f32 v{CSR+i}, v{CSR+i}, v{CSR+4+i}")
    k(f"v_add_f32 v{CSR}, v{CSR}, v{CSR+1}")
    k(f"v_add_f32 v{CSR+2}, v{CSR+2}, v{CSR+3}")
    k(f"v_add_f32 v{CSR}, v{CSR}, v{CSR+2}")
    k(f"v_add_u32 v14, {CSL}, v14")
    k(f"ds_write_b32 v14, v{CSR}")
    for i in range(112):
        k(f"v_mov_b32 v{ACC+i}, 0")
    k("s_waitcnt lgkmcnt(0)")
    L.prologue_sync(k)
    stamp(k, 1)
    L.emit(k, unrolled=unrolled)
    stamp(k, 2)
    CS = FA
    k("v_lshrrev_b32 v14, 4, v0")
    k("v_lshlrev_b32 v14, 4, v14")
    k(f"v_add_u32 v14, {CSL}, v14")
    for q in range(14):
        k(f"ds_read_b128 v[{CS+4*q}:{CS+4*q+3}], v14 offset:{64*q}")
    k("s_lshr_b32 s32, s19, 1")
    k("s_mul_i32 s32, s32, 7")
    k("s_and_b32 s33, s19, 1")
    k("s_lshl_b32 s34, s33, 2")
    k("s_add_u32 s34, s34, s32")
    k("s_add_u32 s32, s32, 3")
    k("s_lshl_b32 s35, s18, 4")
    k("s_lshl_b32 s36, s3, 1")
    k("s_add_u32 s35, s35, s36")
    k("s_lshl_b32 s34, s34, 7")
    k("s_add_u32 s34, s34, s35")
    k("s_lshl_b32 s34, s34, 10")
    k(f"s_add_u32 s34, s34, {WS_HH}")
    k("s_lshl_b32 s32, s32, 7")
    k("s_add_u32 s32, s32, s35")
    k("s_lshl_b32 s32, s32, 10")
    k("s_lshl_b32 s33, s33, 3")
    k("s_add_u32 s32, s32, s33")
    k(f"s_add_u32 s32, s32, {WS_HH}")
    OUT = [FA + 56, FA + 72]
    TMP = FA + 88
    BC_LO = "op_sel_hi:[1,0,1]"

    def pr(r):
        return f"v[{r}:{r+1}]"

    def stream(pp, mt, hf, tb):
        ag = acc(2 * pp, mt) + 2 * hf
        au = acc(2 * pp + 1, mt) + 2 * hf
        cg = CS + 4 * (2 * pp) + 2 * hf
        cu = CS + 4 * (2 * pp + 1) + 2 * hf
        Tg, Tu, X = tb, tb + 2, tb + 4
        p1, p2 = P1[mt], P2[mt]
        return [
            f"v_pk_fma_f32 {pr(Tg)}, {pr(cg)}, {pr(p1)}, {pr(ag)} op_sel_hi:[1,0,1]",
            f"v_pk_fma_f32 {pr(Tu)}, {pr(cu)}, {pr(p1)}, {pr(au)} op_sel_hi:[1,0,1]",
            f"v_pk_mul_f32 {pr(X)}, {pr(Tg)}, {pr(Tg)}",
            f"v_pk_fma_f32 {pr(X)}, {pr(X)}, {pr(p2)}, {pr(p1)} op_sel:[0,0,1] op_sel_hi:[1,0,1]",
            f"v_pk_mul_f32 {pr(X)}, {pr(X)}, {pr(Tg)}",
            f"v_exp_f32 v{X}, v{X}",
            f"v_exp_f32 v{X+1}, v{X+1}",
            f"v_pk_mul_f32 {pr(Tg)}, {pr(Tg)}, {pr(Tu)}",
            f"v_pk_fma_f32 {pr(X)}, {pr(X)}, {pr(p2)}, {pr(p2)} op_sel:[0,1,1] op_sel_hi:[1,1,1]",
            f"v_rcp_f32 v{X}, v{X}",
            f"v_rcp_f32 v{X+1}, v{X+1}",
            None,
            f"v_pk_mul_f32 {pr(Tg)}, {pr(Tg)}, {pr(X)}",
            f"v_cvt_pk_bf16_f32 v{OUT[mt] + 4*(pp>>1) + 2*(pp&1) + hf}, v{Tg}, v{Tg+1}",
        ]

    k("s_waitcnt lgkmcnt(0)")
    for pp in range(7):
        strs = [stream(pp, mt, hf, TMP + 6 * (2 * hf + mt)) for hf in range(2) for mt in range(2)]
        for i in range(len(strs[0])):
            for sx in strs:
                if sx[i]:
                    k(sx[i])
        if pp in (1, 3, 5):
            b = pp >> 1
            for mt in range(2):
                o = OUT[mt] + 4 * b
                k(f"buffer_store_dwordx4 v[{o}:{o+3}], v{VL}, s[8:11], s34 offen offset:{1024*mt}")
            if pp < 5:
                k("s_add_u32 s34, s34, 0x20000")
        if pp == 6:
            for mt in range(2):
                o = OUT[mt] + 12
                k(f"buffer_store_dwordx2 v[{o}:{o+1}], v{VL}, s[8:11], s32 offen offset:{1024*mt}")
    k("K4_END:")
    stamp_end(k, 4)
    k("s_endpgm")
    if check:
        check_trace(k.ins, "K4")
        return None
    k.fix_hazards()
    return dict(name="gu_kernel", grid=256, block=512, lds=LDS4, kern=k, vgpr=256, sgpr=96)
```

```python
from common import *
from gemm import T

P_GRID = 128


def wave_lane(k, swave=3):
    k("v_lshrrev_b32 v1, 6, v0")
    k("v_and_b32 v0, 63, v0")
    k(f"v_readfirstlane_b32 s{swave}, v1")


def emit_ln(k):
    k("v_and_b32 v1, 15, v0")
    k("v_lshrrev_b32 v2, 4, v0")
    k("s_lshl_b32 s16, s2, 15")
    k("s_lshl_b32 s17, s3, 9")
    k("s_add_u32 s16, s16, s17")
    k("v_lshlrev_b32 v3, 11, v1")
    k("v_lshl_add_u32 v3, v2, 4, v3")
    for i in range(8):
        k(f"buffer_load_dwordx4 v[{8+4*i}:{11+4*i}], v3, s[4:7], s16 offen offset:{64*i}")
    k("v_lshlrev_b32 v4, 4, v0")
    k("s_lshl_b32 s18, s3, 20")
    k("s_lshl_b32 s19, s2, 10")
    k("s_add_u32 s18, s18, s19")
    k(f"s_add_u32 s18, s18, {WS_XN}")
    k("v_lshlrev_b32 v5, 4, v1")
    k("s_lshl_b32 s20, s3, 2")
    k("v_add_u32 v6, s20, v5")
    F = 40
    for i in range(8):
        k(f"s_waitcnt vmcnt({7-i})")
        for d in range(4):
            r = 8 + 4 * i + d
            k(f"v_lshlrev_b32 v{F+8*i+2*d}, 16, v{r}")
            k(f"v_and_b32 v{F+8*i+2*d+1}, 0xffff0000, v{r}")
    for c in range(4):
        k(f"v_add_f32 v{8+c}, v{F+c}, v{F+4+c}")
    for i in range(2, 16):
        for c in range(4):
            k(f"v_add_f32 v{8+c}, v{8+c}, v{F+4*i+c}")
    k("v_add_f32 v8, v8, v9")
    k("v_add_f32 v10, v10, v11")
    k("v_add_f32 v8, v8, v10")
    allreduce_rows(k, 8, 9)
    k("ds_write_b32 v6, v8")
    k("s_waitcnt lgkmcnt(0)")
    k("s_barrier")
    k("ds_read_b128 v[12:15], v5")
    k("s_waitcnt lgkmcnt(0)")
    k("v_add_f32 v12, v12, v13")
    k("v_add_f32 v14, v14, v15")
    k("v_add_f32 v12, v12, v14")
    k(f"v_mul_f32 v12, {f2h(1.0/1024)}, v12")
    for i in range(64):
        k(f"v_sub_f32 v{F+i}, v{F+i}, v12")
    for c in range(4):
        k(f"v_mul_f32 v{8+c}, v{F+c}, v{F+c}")
    for i in range(1, 16):
        for c in range(4):
            k(f"v_fmac_f32 v{8+c}, v{F+4*i+c}, v{F+4*i+c}")
    k("v_add_f32 v8, v8, v9")
    k("v_add_f32 v10, v10, v11")
    k("v_add_f32 v8, v8, v10")
    allreduce_rows(k, 8, 9)
    k("ds_write_b32 v6, v8 offset:256")
    k("s_waitcnt lgkmcnt(0)")
    k("s_barrier")
    k("ds_read_b128 v[12:15], v5 offset:256")
    k("s_waitcnt lgkmcnt(0)")
    k("v_add_f32 v12, v12, v13")
    k("v_add_f32 v14, v14, v15")
    k("v_add_f32 v12, v12, v14")
    k(f"v_mov_b32 v13, {f2h(1e-5)}")
    k(f"v_fmac_f32 v13, {f2h(1.0/1024)}, v12")
    k("v_rsq_f32 v7, v13")
    for i in range(8):
        for d in range(4):
            k(f"v_mul_f32 v{F+8*i+2*d}, v{F+8*i+2*d}, v7")
            k(f"v_mul_f32 v{F+8*i+2*d+1}, v{F+8*i+2*d+1}, v7")
            k(f"v_cvt_pk_bf16_f32 v{8+4*i+d}, v{F+8*i+2*d}, v{F+8*i+2*d+1}")
        k(f"buffer_store_dwordx4 v[{8+4*i}:{11+4*i}], v4, s[8:11], s18 offen")
        if i < 7:
            k(f"s_add_u32 s18, s18, {128*1024}")


def emit_pack(k, wgreg):
    k(f"s_lshr_b32 s24, s{wgreg}, 2")
    k(f"s_and_b32 s25, s{wgreg}, 3")
    k("s_lshl_b32 s26, s25, 3")
    k("s_lshl_b32 s27, s3, 1")
    k("s_add_u32 s26, s26, s27")
    k("v_lshrrev_b32 v1, 3, v0")
    k("v_and_b32 v2, 7, v0")
    k("s_movk_i32 s28, 7168")
    k("v_mul_lo_u32 v1, v1, s28")
    k("v_lshl_add_u32 v1, v2, 4, v1")
    for p in range(4):
        k(f"v_add_u32 v{2+p}, {p*(8*7168-1024)}, v1")
    k(f"s_mul_i32 s29, s26, {32*7168}")
    k("s_lshl_b32 s30, s24, 7")
    k("s_add_u32 s29, s29, s30")
    k("s_lshl_b32 s31, s3, 14")
    for sl in range(2):
        for gu in range(2):
            k(f"s_add_u32 m0, s31, {sl*8192+gu*4096}")
            srd = 12 if gu == 0 else 20
            for p in range(4):
                k(f"buffer_load_dwordx4 v{2+p}, s[{srd}:{srd+3}], s29 offen offset:{1024*p} lds")
        if sl == 0:
            k(f"s_add_u32 s29, s29, {32*7168}")
    for b5 in range(2):
        A, B = 32 + 2 * b5, 33 + 2 * b5
        k("s_lshl_b32 s36, s24, 1")
        if b5:
            k("s_add_u32 s36, s36, 1")
        k("s_mul_i32 s37, s36, 9363")
        k("s_lshr_b32 s37, s37, 16")
        k("s_mul_i32 s38, s37, 7")
        k("s_sub_u32 s38, s36, s38")
        k("s_lshl_b32 s39, s37, 1")
        k("s_cmp_ge_u32 s38, 4")
        k("s_cselect_b32 s40, 1, 0")
        k("s_add_u32 s40, s39, s40")
        k("s_cmp_ge_u32 s38, 4")
        k("s_cselect_b32 s41, 4, 0")
        k("s_sub_u32 s41, s38, s41")
        k("s_lshl_b32 s41, s41, 2")
        k("s_add_u32 s42, s41, 2")
        k("s_mov_b32 s43, s40")
        k("s_cmp_eq_u32 s38, 3")
        k("s_cselect_b32 s42, 12, s42")
        k("s_add_u32 s44, s39, 1")
        k("s_cmp_eq_u32 s38, 3")
        k("s_cselect_b32 s43, s44, s43")
        k("s_mul_i32 s44, s40, 14")
        k("s_add_u32 s44, s44, s41")
        k(f"s_mov_b32 s{46+2*b5}, s44")
        k("s_mul_i32 s44, s43, 14")
        k("s_add_u32 s44, s44, s42")
        k(f"s_mov_b32 s{47+2*b5}, s44")
        k("s_mul_i32 s44, s40, 448")
        k("s_add_u32 s44, s44, s41")
        k(f"s_mov_b32 s{A}, s44")
        k("s_mul_i32 s44, s43, 448")
        k("s_add_u32 s44, s44, s42")
        k(f"s_mov_b32 s{B}, s44")
    k("s_mul_i32 s44, s26, 14")
    for r in (32, 33, 34, 35):
        k(f"s_add_u32 s{r}, s{r}, s44")
        k(f"s_lshl_b32 s{r}, s{r}, 10")
        k(f"s_add_u32 s{r}, s{r}, {WS_WGU}")
    k("v_lshrrev_b32 v6, 4, v0")
    k("v_bfe_u32 v7, v0, 2, 2")
    k("v_lshl_add_u32 v6, v6, 2, v7")
    k("v_lshlrev_b32 v6, 7, v6")
    k("v_and_b32 v7, 3, v0")
    k("v_lshl_add_u32 v6, v7, 4, v6")
    k("v_add_u32 v6, s31, v6")
    k("v_lshlrev_b32 v7, 4, v0")
    for d in range(4):
        k(f"v_mov_b32 v{8+d}, 0x3f803f80")
    k("v_and_b32 v12, 2, v0")
    k("v_cmp_eq_u32 s[52:53], 0, v12")
    k("v_cmp_ne_u32 s[54:55], 0, v12")
    CSUM = 64
    for i in range(32):
        k(f"v_mov_b32 v{CSUM+i}, 0")
    G, U, O = 16, 24, 32
    k("s_waitcnt vmcnt(0)")
    for sl in range(2):
        for b5 in range(2):
            for eh in range(2):
                off = sl * 8192 + 64 * b5 + 8 * eh
                for h in range(2):
                    k(f"ds_read_b64_tr_b16 v[{G+2*h}:{G+2*h+1}], v6 offset:{off + h*2048}")
                for h in range(2):
                    k(f"ds_read_b64_tr_b16 v[{U+2*h}:{U+2*h+1}], v6 offset:{off + 4096 + h*2048}")
                k("s_waitcnt lgkmcnt(0)")
                k("s_mov_b64 vcc, s[52:53]")
                for d in range(4):
                    k(f"v_cndmask_b32_dpp v{O+d}, v{U+d}, v{G+d}, vcc quad_perm:[0,1,0,1] row_mask:0xf bank_mask:0xf")
                k("s_mov_b64 vcc, s[54:55]")
                for d in range(4):
                    k(f"v_cndmask_b32_dpp v{O+4+d}, v{G+d}, v{U+d}, vcc quad_perm:[2,3,2,3] row_mask:0xf bank_mask:0xf")
                base = (32 + 2 * b5) + eh
                k(f"buffer_store_dwordx4 v[{O}:{O+3}], v7, s[8:11], s{base} offen")
                k(f"buffer_store_dwordx4 v[{O+4}:{O+7}], v7, s[8:11], s{base} offen offset:1024")
                for dd in range(2):
                    c = CSUM + 4 * (4 * b5 + 2 * eh + dd)
                    k(f"v_mfma_f32_16x16x32_bf16 v[{c}:{c+3}], v[{O+4*dd}:{O+4*dd+3}], v[8:11], v[{c}:{c+3}]")
        if sl == 0:
            for r in (32, 33, 34, 35):
                k(f"s_add_u32 s{r}, s{r}, {14*1024}")
    k("v_lshrrev_b32 v12, 4, v0")
    k("v_lshlrev_b32 v12, 4, v12")
    k("s_lshl_b32 s44, s3, 9")
    k("s_add_u32 s44, s44, 65536")
    k("v_add_u32 v12, s44, v12")
    for t in range(8):
        k(f"ds_write_b128 v12, v[{CSUM+4*t}:{CSUM+4*t+3}] offset:{64*t}")
    k("s_waitcnt lgkmcnt(0)")
    k("s_barrier")
    k("s_cmp_ge_u32 s3, 2")
    k("s_cbranch_scc1 P_PACK_DONE")
    k("s_lshl_b32 s44, s3, 8")
    k("v_lshlrev_b32 v12, 2, v0")
    k("v_add_u32 v12, s44, v12")
    k("v_add_u32 v13, 65536, v12")
    for w in range(4):
        k(f"ds_read_b32 v{16+w}, v13 offset:{512*w}")
    k("s_cmp_eq_u32 s3, 0")
    k("s_cselect_b32 s44, s46, s48")
    k("s_cselect_b32 s45, s47, s49")
    k("v_lshrrev_b32 v14, 4, v0")
    k("v_cmp_gt_u32 vcc, 2, v14")
    k("v_mov_b32 v15, s45")
    k("v_mov_b32 v20, s44")
    k("v_cndmask_b32 v15, v15, v20, vcc")
    k("v_and_b32 v14, 1, v14")
    k("v_add_u32 v15, v15, v14")
    k("s_mul_i32 s44, s25, 448")
    k("v_add_u32 v15, s44, v15")
    k("v_lshlrev_b32 v15, 6, v15")
    k("v_and_b32 v14, 15, v0")
    k("v_lshl_add_u32 v15, v14, 2, v15")
    k(f"s_mov_b32 s44, {WS_CS}")
    k("s_waitcnt lgkmcnt(0)")
    k("v_add_f32 v16, v16, v17")
    k("v_add_f32 v18, v18, v19")
    k("v_add_f32 v16, v16, v18")
    k("buffer_store_dword v16, v15, s[8:11], s44 offen")
    k("P_PACK_DONE:")


def kernel_P(do_pack=True):
    k = Kern("prep_kernel")
    stamp_begin(k)
    k(f"s_cmp_ge_u32 s2, {P_GRID}")
    k("s_cbranch_scc1 P_END")
    wave_lane(k)
    load_srds(k, [(4, KA_X, 2048 * 1024 * 2), (8, KA_WS, WS_SIZE)])
    emit_ln(k)
    stamp_end(k, 0)
    k("P_END:")
    k("s_endpgm")
    k.fix_hazards()
    return dict(name="prep_kernel", grid=P_GRID, block=256, lds=1024, kern=k, vgpr=104, sgpr=96)
```

```python
import sys
import common
from common import *
import k_prep, k1, k2, k35, k4

def build_all(which="P12345", check=True, **kw):
    ks = []
    if "P" in which:
        ks.append(k_prep.kernel_P())
    if "1" in which:
        if check: k1.kernel_K1(unrolled=True, check=True)
        ks.append(k1.kernel_K1())
    if "2" in which:
        if check: k2.kernel_K2(unrolled=True, check=True)
        ks.append(k2.kernel_K2())
    if "3" in which:
        if check: k35.kernel_K3(unrolled=True, check=True)
        ks.append(k35.kernel_K3())
    if "4" in which:
        if check: k4.kernel_K4(unrolled=True, check=True)
        ks.append(k4.kernel_K4())
    if "5" in which:
        if check: k35.kernel_K5(unrolled=True, check=True)
        ks.append(k35.kernel_K5())
    return ks

def main(out, which, opts):
    if "stamp" in opts:
        common.STAMP = True
    ks = build_all(which)
    for o in opts:
        if o.startswith("st="):
            fl = o[3:].replace("+", " ")
            for kd in ks:
                for x in kd["kern"].ins:
                    if x.op.startswith("buffer_store") and "s[88:91]" not in x.text and fl not in x.text:
                        x.text += " " + fl
    for kd in ks:
        print(kd["name"], "instrs", kd["kern"].count(), "regs", kd["kern"].maxregs(), "declared vgpr", kd["vgpr"], "lds", kd["lds"])
    open(out, "w").write(build_file(ks))

if __name__ == "__main__":
    main(sys.argv[1], sys.argv[2], sys.argv[3:])
```

```python
from common import *
from gemm import T, Loop
from k_prep import wave_lane
import math

K1_R = 3
SLOT1 = 40960
CSL1 = K1_R * SLOT1
STL1 = CSL1 + 1536
LDS1 = STL1 + 1024
POLL_MAX = 2000


def stats_body(k, X, bar=None):
    A = 4
    TM = 12
    def dpp_reduce(r):
        k(f"v_add_f32_dpp v{r}, v{r}, v{r} quad_perm:[1,0,3,2] row_mask:0xf bank_mask:0xf")
        k(f"v_add_f32_dpp v{r}, v{r}, v{r} quad_perm:[2,3,0,1] row_mask:0xf bank_mask:0xf")
        k(f"v_add_f32_dpp v{r}, v{r}, v{r} row_half_mirror row_mask:0xf bank_mask:0xf")
    def fold():
        for i in range(2):
            k(f"v_pk_add_f32 v[{A+2*i}:{A+2*i+1}], v[{A+2*i}:{A+2*i+1}], v[{A+4+2*i}:{A+5+2*i}]")
        k(f"v_pk_add_f32 v[{A}:{A+1}], v[{A}:{A+1}], v[{A+2}:{A+3}]")
        k(f"v_add_f32 v{A}, v{A}, v{A+1}")
        dpp_reduce(A)
    for i in range(8):
        k(f"v_mov_b32 v{A+i}, 0")
    for d in range(64):
        t = TM + 2 * (d & 1)
        a = A + 2 * (d & 3)
        k(f"v_lshlrev_b32 v{t}, 16, v{X+d}")
        k(f"v_and_b32 v{t+1}, 0xffff0000, v{X+d}")
        k(f"v_pk_add_f32 v[{a}:{a+1}], v[{a}:{a+1}], v[{t}:{t+1}]")
        if d == 31 and bar:
            bar(0)
    fold()
    k(f"v_mul_f32 v2, {f2h(-1.0/1024)}, v{A}")
    if bar:
        bar(1)
    for i in range(8):
        k(f"v_mov_b32 v{A+i}, 0")
    for d in range(64):
        t = TM + 2 * (d & 1)
        a = A + 2 * (d & 3)
        k(f"v_lshlrev_b32 v{t}, 16, v{X+d}")
        k(f"v_and_b32 v{t+1}, 0xffff0000, v{X+d}")
        k(f"v_pk_add_f32 v[{t}:{t+1}], v[{t}:{t+1}], v[2:3] op_sel_hi:[1,0]")
        k(f"v_pk_fma_f32 v[{a}:{a+1}], v[{t}:{t+1}], v[{t}:{t+1}], v[{a}:{a+1}]")
        if d == 31 and bar:
            bar(2)
    fold()
    k(f"v_mov_b32 v3, {f2h(1e-5)}")
    k(f"v_fmac_f32 v3, {f2h(1.0/1024)}, v{A}")
    k("v_rsq_f32 v3, v3")


def emit_helper(k):
    X = 16
    k("K1_HELP:")
    load_srds(k, [(4, KA_WQKV, 1024 * 3072 * 2), (8, KA_WS, WS_SIZE), (12, KA_X, 2048 * 1024 * 2),
                  (24, KA_DBG, 256)])
    tile_coords(k)
    k("s_lshl_b32 s21, s18, 7")
    k("s_lshl_b32 s22, s19, 3")
    k("s_add_u32 s22, s22, s21")
    k("s_lshl_b32 s23, s22, 11")
    k("v_lshrrev_b32 v1, 3, v0")
    k("v_lshlrev_b32 v17, 11, v1")
    k("v_and_b32 v18, 7, v0")
    k("v_lshl_add_u32 v81, v18, 4, v17")
    for i in range(16):
        k(f"buffer_load_dwordx4 v[{X+4*i}:{X+4*i+3}], v81, s[12:15], s23 offen offset:{128*i}")
    k("s_and_b32 s28, s17, 7")
    k("s_lshr_b32 s29, s17, 3")
    k("v_lshrrev_b32 v82, 5, v0")
    k("v_lshlrev_b32 v82, 6, v82")
    k("v_and_b32 v83, 7, v0")
    k("v_add_u32 v82, v82, v83")
    k("s_lshl_b32 s30, s28, 3")
    k("v_add_u32 v82, s30, v82")
    k("s_movk_i32 s30, 6144")
    k("v_mul_lo_u32 v82, v82, s30")
    k("v_bfe_u32 v83, v0, 3, 2")
    k("v_lshl_add_u32 v82, v83, 11, v82")
    k("v_cmp_eq_u32 vcc, 3, v83")
    k("v_mov_b32 v84, 0x7fff0000")
    k("v_cndmask_b32 v82, v82, v84, vcc")
    k("s_lshl_b32 s30, s19, 7")
    k(f"s_add_u32 s30, s30, {2*64*6144}")
    k("v_and_b32 v83, 31, v0")
    k("s_lshl_b32 s31, s29, 5")
    k("s_add_u32 s31, s31, s21")
    k("v_add_u32 v83, s31, v83")
    k("v_lshlrev_b32 v83, 11, v83")
    k("v_lshrrev_b32 v84, 5, v0")
    k("v_lshl_add_u32 v83, v84, 7, v83")
    k("s_movk_i32 s31, 256")

    def pf():
        k("buffer_load_dword v85, v82, s[4:7], s30 offen")
        k("buffer_load_dword v86, v83, s[12:15], s31 offen")
        k(f"s_add_u32 s30, s30, {128*6144}")
        k("s_add_u32 s31, s31, 256")

    pf()
    k("v_and_b32 v87, 7, v0")
    k("v_cmp_eq_u32 vcc, 0, v87")
    k("v_lshlrev_b32 v87, 3, v1")
    k("v_mov_b32 v88, 0x7fff0000")
    k("v_cndmask_b32 v87, v88, v87, vcc")
    k("s_lshl_b32 s32, s22, 3")
    k(f"s_add_u32 s32, s32, {WS_ST1}")
    k("s_lshl_b32 s33, s18, 2")
    k("s_lshl_b32 s34, s21, 3")
    k(f"s_add_u32 s34, s34, {WS_ST1}")
    k("v_lshlrev_b32 v89, 4, v0")
    k("v_lshlrev_b32 v90, 3, v0")
    k(f"v_add_u32 v90, {STL1}, v90")
    k("v_mov_b32 v91, 0")
    k("v_mov_b32 v92, 1")
    k("s_mov_b32 s35, 0")
    k("s_mov_b32 s36, 0")

    k("s_barrier")
    pf()
    k("s_waitcnt vmcnt(4)")

    def bar(i):
        k("s_barrier")
        if i == 0:
            pf()
        if i == 2:
            pf()
    stats_body(k, X, bar)
    k("buffer_store_dwordx2 v[2:3], v87, s[8:11], s32 offen sc1")
    k("s_barrier")
    k("s_barrier")
    k("s_waitcnt vmcnt(0)")
    k("s_mov_b64 exec, 1")
    k("buffer_atomic_add v92, v91, s[24:27], s33 offen")
    k("s_mov_b64 exec, -1")
    pf()
    k("s_barrier")
    k("s_barrier")
    pf()
    k("s_barrier")
    pf()
    k("s_barrier")
    k("buffer_load_dword v93, v91, s[24:27], s33 offen sc1")
    k("s_barrier")
    k("s_barrier")
    k("s_waitcnt vmcnt(0)")
    k("v_readfirstlane_b32 s37, v93")
    k("s_cmp_eq_u32 s37, 16")
    k("s_cbranch_scc0 K1_H_NOTYET")
    k("s_mov_b32 s35, 1")
    k("buffer_load_dwordx4 v[4:7], v89, s[8:11], s34 offen sc1")
    k("s_branch K1_H_B12")
    k("K1_H_NOTYET:")
    k("buffer_load_dword v93, v91, s[24:27], s33 offen sc1")
    k("K1_H_B12:")
    k("s_barrier")
    k("s_barrier")
    k("s_cmp_eq_u32 s35, 1")
    k("s_cbranch_scc1 K1_H_B14")
    k(f"s_movk_i32 s38, {POLL_MAX}")
    k("K1_H_POLL:")
    k("s_waitcnt vmcnt(0)")
    k("v_readfirstlane_b32 s37, v93")
    k("s_cmp_eq_u32 s37, 16")
    k("s_cbranch_scc1 K1_H_GOT")
    k("s_sub_u32 s38, s38, 1")
    k("s_cmp_eq_u32 s38, 0")
    k("s_cbranch_scc1 K1_H_FALLBACK")
    k("s_sleep 4")
    k("buffer_load_dword v93, v91, s[24:27], s33 offen sc1")
    k("s_branch K1_H_POLL")
    k("K1_H_GOT:")
    k("buffer_load_dwordx4 v[4:7], v89, s[8:11], s34 offen sc1")
    k("K1_H_B14:")
    k("s_barrier")
    k("s_barrier")
    k("s_cmp_eq_u32 s36, 1")
    k("s_cbranch_scc1 K1_H_B16")
    k("s_waitcnt vmcnt(0)")
    k("ds_write2_b32 v90, v4, v6 offset0:0 offset1:1")
    k("ds_write2_b32 v90, v5, v7 offset0:128 offset1:129")
    k("K1_H_B16:")
    k("s_waitcnt lgkmcnt(0)")
    k("s_barrier")
    k("s_endpgm")
    k("K1_H_FALLBACK:")
    k("s_mov_b32 s36, 1")
    k("s_lshl_b32 s23, s21, 11")
    k("s_mov_b32 s38, 16")
    k("v_lshlrev_b32 v94, 2, v1")
    k(f"v_add_u32 v94, {STL1}, v94")
    k("K1_H_FB_LOOP:")
    for i in range(16):
        k(f"buffer_load_dwordx4 v[{X+4*i}:{X+4*i+3}], v81, s[12:15], s23 offen offset:{128*i}")
    k("s_waitcnt vmcnt(0)")
    stats_body(k, X, None)
    k("ds_write_b32 v94, v2")
    k("ds_write_b32 v94, v3 offset:512")
    k("v_add_u32 v94, 32, v94")
    k(f"s_add_u32 s23, s23, {8*2048}")
    k("s_sub_u32 s38, s38, 1")
    k("s_cmp_lg_u32 s38, 0")
    k("s_cbranch_scc1 K1_H_FB_LOOP")
    k("s_branch K1_H_B14")


def tile_coords(k):
    k("s_and_b32 s16, s2, 7")
    k("s_lshr_b32 s17, s2, 3")
    k("s_lshr_b32 s18, s16, 2")
    k("s_lshl_b32 s18, s18, 3")
    k("s_and_b32 s19, s17, 7")
    k("s_add_u32 s18, s18, s19")
    k("s_and_b32 s19, s16, 3")
    k("s_lshl_b32 s19, s19, 2")
    k("s_lshr_b32 s20, s17, 3")
    k("s_add_u32 s19, s19, s20")


def kernel_K1(R=K1_R, unrolled=False, check=False):
    k = Kern("qkv_kernel")
    stamp_begin(k)
    k("s_cmp_ge_u32 s2, 256")
    k("s_cbranch_scc1 K1_END")
    wave_lane(k)
    k("s_cmp_eq_u32 s3, 8")
    k("s_cbranch_scc1 K1_HELP")
    load_srds(k, [(4, KA_WQKV, 1024 * 3072 * 2), (8, KA_WS, WS_SIZE), (12, KA_X, 2048 * 1024 * 2)])
    stamp(k, 3)
    tile_coords(k)
    k("s_and_b32 s21, s3, 3")
    k("s_lshr_b32 s22, s3, 2")
    k("s_lshl_b32 s24, s18, 3")
    k("s_add_u32 s24, s24, s3")
    k("s_lshl_b32 s24, s24, 15")
    k(f"s_mul_i32 s25, s3, {8*6144}")
    k("s_lshl_b32 s26, s19, 7")
    k("s_add_u32 s25, s25, s26")
    k("s_lshl_b32 s26, s3, 11")
    k("s_mul_i32 s27, s3, 3072")
    k("s_add_u32 s27, s27, 16384")
    VL = 1
    VA = 2
    VX = 5
    k(f"v_lshlrev_b32 v{VL}, 4, v0")
    k("v_lshrrev_b32 v8, 3, v0")
    k("v_and_b32 v9, 7, v0")
    k("v_xor_b32 v9, v9, v8")
    k("v_lshlrev_b32 v9, 4, v9")
    k(f"v_lshl_add_u32 v{VX}, v8, 11, v9")
    k(f"v_add_u32 v{VX+1}, {8*2048-1024}, v{VX}")
    k("s_movk_i32 s28, 6144")
    k("v_mul_lo_u32 v10, v8, s28")
    k("v_bfe_u32 v7, v0, 4, 1")
    k("s_and_b32 s29, s3, 1")
    k("s_lshl_b32 s29, s29, 1")
    k("v_or_b32 v7, s29, v7")
    k("v_bfe_u32 v8, v0, 1, 2")
    k("v_xor_b32 v7, v7, v8")
    k("v_lshlrev_b32 v7, 5, v7")
    k("v_and_b32 v8, 1, v0")
    k("v_lshl_add_u32 v7, v8, 4, v7")
    k("v_add_u32 v10, v10, v7")
    for sub in range(3):
        k(f"v_add_u32 v{VA+sub}, {1024*sub}, v10")

    ACC = 32
    FA = ACC + 48
    FB = FA + 48
    CSA = FB + 16
    ONES = CSA + 12
    NV = ONES + 4
    VB = 7
    VT = VB + 2 * R
    assert VT + 2 * R <= 28

    def acc(t, mt):
        return ACC + (t * 2 + mt) * 4

    def reads(slot, ks, buf, st):
        out = []
        for mt in range(2):
            r = FB + buf * 8 + mt * 4
            out.append(T(f"ds_read_b128 v[{r}:{r+3}], v{VB+2*slot+ks} offset:{mt*2048}", use=(("B", slot), st)))
        for t in range(6):
            sub, i = t >> 1, t & 1
            for h in range(2):
                r = FA + buf * 24 + t * 4 + 2 * h
                out.append(T(f"ds_read_b64_tr_b16 v[{r}:{r+1}], v{VT+2*slot+i} offset:{ks*12288 + sub*1024 + h*512}",
                             use=(("A", slot), st)))
        return out

    def mfmas(buf):
        out = []
        for t in range(6):
            for mt in range(2):
                a = FA + buf * 24 + t * 4
                b = FB + buf * 8 + mt * 4
                c = acc(t, mt)
                if t < 4:
                    out.append(T(f"v_mfma_f32_16x16x32_bf16 v[{c}:{c+3}], v[{a}:{a+3}], v[{b}:{b+3}], v[{c}:{c+3}]"))
                else:
                    out.append(T(f"v_mfma_f32_16x16x32_bf16 v[{c}:{c+3}], v[{b}:{b+3}], v[{a}:{a+3}], v[{c}:{c+3}]"))
        return out

    def dma(slot, st):
        g1 = [T(f"s_add_u32 m0, s26, {slot*SLOT1}")]
        for i in range(2):
            g1.append(T(f"buffer_load_dwordx4 v{VX+i}, s[12:15], s24 offen offset:{1024*i} lds", fill=(("B", slot), st)))
        g1.append(T("s_add_u32 s24, s24, 128", bump=True))
        g2 = [T(f"s_add_u32 m0, s27, {slot*SLOT1}")]
        for sub in range(3):
            g2.append(T(f"buffer_load_dwordx4 v{VA+sub}, s[4:7], s25 offen offset:{1024*sub} lds", fill=(("A", slot), st)))
        g2.append(T(f"s_add_u32 s25, s25, {64*6144}", bump=True))
        return [g1, g2]

    nl = [0]

    def extra(st, ks):
        buf = (st * 2 + ks) & 1
        n = nl[0]
        nl[0] += 1
        out = [T(f"s_cmp_lg_u32 s23, {ks}"), T(f"s_cbranch_scc1 K1_CE{n}"), T(f"s_cbranch_vccnz K1_CB{n}")]
        for half in range(2):
            for i in range(3):
                a = FA + buf * 24 + (3 * half + i) * 4
                c = CSA + 4 * i
                out.append(T(f"v_mfma_f32_16x16x32_bf16 v[{c}:{c+3}], v[{a}:{a+3}], v[{ONES}:{ONES+3}], v[{c}:{c+3}]"))
            if half == 0:
                out.append(T(f"s_branch K1_CE{n}"))
                out.append(T(f"K1_CB{n}:"))
        out.append(T(f"K1_CE{n}:"))
        return [(99, x) for x in out]

    L = Loop("k1", 16, 2, R, 5, reads, mfmas, dma, 30,
             rpos=lambda i, nr, nm: (i * nm) // (nr + 2),
             dpos=lambda i, nd, nm: 2 + 2 * i, extra=extra)
    L.prologue_dma(k)
    stamp(k, 4)
    t0, t1, t2, t3 = 28, 29, 30, 31
    k(f"v_and_b32 v{t0}, 15, v0")
    k(f"v_lshrrev_b32 v{t1}, 4, v0")
    k(f"v_and_b32 v{t2}, 7, v0")
    k(f"v_xor_b32 v{t2}, v{t2}, v{t1}")
    k(f"v_lshlrev_b32 v{t2}, 4, v{t2}")
    k(f"v_lshl_add_u32 v{t2}, v{t0}, 7, v{t2}")
    k("s_lshl_b32 s29, s21, 12")
    k(f"v_add_u32 v{VB}, s29, v{t2}")
    k(f"v_xor_b32 v{VB+1}, 64, v{VB}")
    for sl in range(1, R):
        for ks in range(2):
            k(f"v_add_u32 v{VB+2*sl+ks}, {sl*SLOT1}, v{VB+ks}")
    k(f"v_lshrrev_b32 v{t0}, 4, v0")
    k(f"v_mul_u32_u24 v{t1}, 3072, v{t0}")
    k(f"v_bfe_u32 v{t2}, v0, 2, 2")
    k(f"v_lshl_add_u32 v{t1}, v{t2}, 7, v{t1}")
    k(f"v_and_b32 v{t3}, 3, v0")
    k(f"v_lshl_add_u32 v{t1}, v{t3}, 3, v{t1}")
    k(f"v_lshrrev_b32 v{t2}, 1, v{t2}")
    k(f"v_and_b32 v{t0}, 1, v{t0}")
    k(f"v_lshl_add_u32 v{t2}, v{t0}, 1, v{t2}")
    k("s_lshl_b32 s29, s22, 1")
    for i in range(2):
        k(f"v_xor_b32 v{t3}, s29, v{t2}")
        if i:
            k(f"v_xor_b32 v{t3}, 1, v{t3}")
        k(f"v_lshl_add_u32 v{VT+i}, v{t3}, 5, v{t1}")
        k(f"v_add_u32 v{VT+i}, 16384, v{VT+i}")
        for sl in range(1, R):
            k(f"v_add_u32 v{VT+2*sl+i}, {sl*SLOT1}, v{VT+i}")
    k("s_lshr_b32 s23, s21, 1")
    k("s_and_b32 s29, s21, 1")
    k("s_cmp_lg_u32 s29, 0")
    k("s_cselect_b64 vcc, -1, 0")
    for i in range(48):
        k(f"v_mov_b32 v{ACC+i}, 0")
    for i in range(12):
        k(f"v_mov_b32 v{CSA+i}, 0")
    for i in range(4):
        k(f"v_mov_b32 v{ONES+i}, 0x3f803f80")
    L.prologue_sync(k)
    stamp(k, 1)
    L.emit(k, unrolled=unrolled)
    stamp(k, 2)
    k("s_mul_i32 s29, s22, 6")
    k("s_and_b32 s31, s21, 1")
    k("s_mul_i32 s31, s31, 3")
    k("s_add_u32 s29, s29, s31")
    k("s_lshl_b32 s29, s29, 1")
    k("s_add_u32 s29, s29, s23")
    k("s_lshl_b32 s29, s29, 6")
    k(f"s_add_u32 s29, s29, {CSL1}")
    k(f"v_lshrrev_b32 v{t0}, 4, v0")
    k(f"v_and_b32 v{t1}, 15, v0")
    k(f"v_lshlrev_b32 v{t2}, 4, v{t0}")
    k(f"v_add_u32 v{t3}, s29, v{t2}")
    k("s_mov_b32 exec_lo, 0x00010001")
    k("s_mov_b32 exec_hi, 0x00010001")
    for i in range(3):
        k(f"ds_write_b128 v{t3}, v[{CSA+4*i}:{CSA+4*i+3}] offset:{128*i}")
    k("s_mov_b64 exec, -1")
    k("s_lshl_b32 s31, s19, 1")
    k("s_add_u32 s31, s31, s22")
    k("s_lshl_b32 s32, s18, 3")
    k("s_lshl_b32 s33, s21, 1")
    k("s_add_u32 s32, s32, s33")
    k("s_lshl_b32 s33, s31, 7")
    k("s_add_u32 s33, s33, s32")
    k("s_lshl_b32 s33, s33, 10")
    k(f"s_add_u32 s33, s33, {WS_Q}")
    k("s_lshl_b32 s34, s31, 6")
    k("s_lshr_b32 s35, s32, 1")
    k("s_add_u32 s34, s34, s35")
    k("s_lshl_b32 s34, s34, 12")
    k(f"s_add_u32 s34, s34, {WS_KV}")
    k("s_mul_i32 s29, s22, 768")
    k(f"s_add_u32 s29, s29, {CSL1}")
    k(f"v_add_u32 v8, s29, v{t2}")
    k(f"v_lshl_add_u32 v9, v{t1}, 2, s29")
    k("s_lshl_b32 s29, s21, 7")
    k(f"s_add_u32 s29, s29, {STL1}")
    k(f"v_lshl_add_u32 v10, v{t1}, 2, s29")
    k(f"v_add_u32 v11, s29, v{t2}")
    k("s_waitcnt lgkmcnt(0)")
    k("s_barrier")
    C0, C1, CV, QK, VS = FA, FA + 16, FA + 32, FA + 36, FA + 40
    KS_ = FA + 56
    for t in range(4):
        k(f"ds_read_b128 v[{C0+4*t}:{C0+4*t+3}], v8 offset:{128*t}")
        k(f"ds_read_b128 v[{C1+4*t}:{C1+4*t+3}], v8 offset:{128*t+64}")
    for mt in range(2):
        k(f"ds_read_b32 v{KS_+2*mt}, v10 offset:{64*mt}")
        k(f"ds_read_b32 v{KS_+2*mt+1}, v10 offset:{64*mt+512}")
    for t in range(2):
        k(f"ds_read_b32 v{CV+t}, v9 offset:{128*(4+t)}")
        k(f"ds_read_b32 v{CV+2+t}, v9 offset:{128*(4+t)+64}")
    for mt in range(2):
        k(f"ds_read_b128 v[{VS+8*mt}:{VS+8*mt+3}], v11 offset:{64*mt}")
        k(f"ds_read_b128 v[{VS+8*mt+4}:{VS+8*mt+7}], v11 offset:{64*mt+512}")
    qs = (32 ** -0.5) * math.log2(math.e)

    def pr(r):
        return f"v[{r}:{r+1}]"
    k("s_waitcnt lgkmcnt(8)")
    for t in range(4):
        for h in range(2):
            k(f"v_pk_add_f32 {pr(C0+4*t+2*h)}, {pr(C0+4*t+2*h)}, {pr(C1+4*t+2*h)}")
    for mt in range(2):
        k(f"v_mov_b32 v{QK+2*mt}, v{KS_+2*mt}")
        k(f"v_mul_f32 v{QK+2*mt+1}, {f2h(qs)}, v{KS_+2*mt+1}")
    O = C1
    for grp, (sp, base, off) in enumerate(((QK, 33, 0), (KS_, 34, 0))):
        for mt in range(2):
            p = sp + 2 * mt
            for t in range(2):
                c = acc(2 * grp + t, mt)
                cs = C0 + 4 * (2 * grp + t)
                for h in range(2):
                    k(f"v_pk_fma_f32 {pr(c+2*h)}, {pr(cs+2*h)}, {pr(p)}, {pr(c+2*h)} op_sel_hi:[1,0,1]")
            for t in range(2):
                c = acc(2 * grp + t, mt)
                for h in range(2):
                    k(f"v_pk_mul_f32 {pr(c+2*h)}, {pr(c+2*h)}, {pr(p)} op_sel:[0,1] op_sel_hi:[1,1]")
            o = O + 8 * grp + 4 * mt
            for t in range(2):
                c = acc(2 * grp + t, mt)
                k(f"v_cvt_pk_bf16_f32 v{o+2*t}, v{c}, v{c+1}")
                k(f"v_cvt_pk_bf16_f32 v{o+2*t+1}, v{c+2}, v{c+3}")
            k(f"buffer_store_dwordx4 v[{o}:{o+3}], v{VL}, s[8:11], s{base} offen offset:{1024*mt}")
    k("s_waitcnt lgkmcnt(0)")
    k(f"v_pk_add_f32 {pr(CV)}, {pr(CV)}, {pr(CV+2)}")
    O3 = C0
    for t in range(2):
        sel = f"op_sel:[0,{t},0] op_sel_hi:[1,{t},1]"
        for mt in range(2):
            c = acc(4 + t, mt)
            for h in range(2):
                k(f"v_pk_fma_f32 {pr(c+2*h)}, {pr(VS+8*mt+2*h)}, {pr(CV)}, {pr(c+2*h)} {sel}")
        for mt in range(2):
            c = acc(4 + t, mt)
            for h in range(2):
                k(f"v_pk_mul_f32 {pr(c+2*h)}, {pr(c+2*h)}, {pr(VS+8*mt+4+2*h)}")
        for mt in range(2):
            c = acc(4 + t, mt)
            k(f"v_cvt_pk_bf16_f32 v{O3+4*t+2*mt}, v{c}, v{c+1}")
            k(f"v_cvt_pk_bf16_f32 v{O3+4*t+2*mt+1}, v{c+2}, v{c+3}")
        k(f"buffer_store_dwordx4 v[{O3+4*t}:{O3+4*t+3}], v{VL}, s[8:11], s34 offen offset:{2048+1024*t}")
    k("K1_END:")
    stamp_end(k, 1)
    k("s_endpgm")
    if check:
        check_trace(k.ins, "K1")
        return None
    emit_helper(k)
    k.fix_hazards()
    return dict(name="qkv_kernel", grid=256, block=576, lds=LDS1, kern=k, vgpr=NV, sgpr=96)
```

```python
from kb import Kern, Inst, check_trace

S_TOK, D, H, DH, DF = 2048, 1024, 32, 32, 3584

WS_XN = 0x0000000
WS_Q = 0x0400000
WS_KV = 0x0800000
WS_O = 0x1000000
WS_H = 0x1400000
WS_STAT = 0x1800000
WS_ST1 = 0x1860000
WS_CS = 0x1880000
WS_WGU = 0x1900000
WS_HH = 0x2800000
WS_SIZE = 0x10000000

KA_X, KA_WQKV, KA_WO, KA_BX, KA_WG, KA_WU, KA_WD, KA_OUT, KA_DBG, KA_WS = [8 * i for i in range(10)]


def v(i, n=1):
    return f"v{i}" if n == 1 else f"v[{i}:{i+n-1}]"


def a_(i, n=1):
    return f"a{i}" if n == 1 else f"a[{i}:{i+n-1}]"


def s(i, n=1):
    return f"s{i}" if n == 1 else f"s[{i}:{i+n-1}]"


def srd_from(k, d, base, nbytes):
    k(f"s_mov_b32 s{d}, s{base}")
    k(f"s_mov_b32 s{d+1}, s{base+1}")
    k(f"s_mov_b32 s{d+2}, {nbytes:#x}")
    k(f"s_mov_b32 s{d+3}, 0x00020000")


def load_srds(k, lst, tmp=40):
    for i, (d, off, nb) in enumerate(lst):
        k(f"s_load_dwordx2 s[{tmp+2*i}:{tmp+2*i+1}], s[0:1], {off}")
    k("s_waitcnt lgkmcnt(0)")
    for i, (d, off, nb) in enumerate(lst):
        srd_from(k, d, tmp + 2 * i, nb)


def karg_issue(k, lst, tmp=40):
    for i, (d, off, nb) in enumerate(lst):
        k(f"s_load_dwordx2 s[{tmp+2*i}:{tmp+2*i+1}], s[0:1], {off}")


def karg_wait(k, lst, tmp=40):
    k("s_waitcnt lgkmcnt(0)")
    for i, (d, off, nb) in enumerate(lst):
        srd_from(k, d, tmp + 2 * i, nb)


def kdesc(name, vgpr, agpr=0, sgpr=96):
    acc = (vgpr + 3) // 4 * 4
    tot = acc + agpr if agpr else vgpr
    return (f".p2align 6\n.amdhsa_kernel {name}\n"
            f"  .amdhsa_next_free_vgpr {tot}\n"
            f"  .amdhsa_next_free_sgpr {sgpr}\n"
            f"  .amdhsa_accum_offset {acc}\n"
            f"  .amdhsa_group_segment_fixed_size 0\n"
            f"  .amdhsa_kernarg_size 80\n"
            f"  .amdhsa_user_sgpr_count 2\n"
            f"  .amdhsa_user_sgpr_kernarg_segment_ptr 1\n"
            f"  .amdhsa_system_sgpr_workgroup_id_x 1\n"
            f".end_amdhsa_kernel\n")


def khead(name):
    return f".globl {name}\n.p2align 8\n.type {name},@function\n{name}:\n"


HEADER = """; Kernarg layout for this problem (80 bytes, ptrs only, base s[0:1]):
"""


def build_file(kernels):
    out = HEADER
    for kd in kernels:
        out += f"; @launch kernel={kd['name']} grid=({kd['grid']},1,1) block=({kd['block']},1,1) lds={kd['lds']}\n"
    out += '.amdgcn_target "amdgcn-amd-amdhsa--gfx950"\n.text\n'
    seen = set()
    for kd in kernels:
        if kd["name"] in seen:
            continue
        seen.add(kd["name"])
        out += khead(kd["name"]) + kd["kern"].text()
    out += '.section .rodata,"a"\n'
    seen = set()
    for kd in kernels:
        if kd["name"] in seen:
            continue
        seen.add(kd["name"])
        out += kdesc(kd["name"], kd["vgpr"], kd.get("agpr", 0), kd.get("sgpr", 96))
    return out


def allreduce_rows(k, x, tmp, op="v_add_f32"):
    k(f"v_mov_b32 v{tmp}, v{x}")
    k(f"v_permlane16_swap_b32 v{x}, v{tmp}")
    k(f"{op} v{x}, v{x}, v{tmp}")
    k(f"v_mov_b32 v{tmp}, v{x}")
    k(f"v_permlane32_swap_b32 v{x}, v{tmp}")
    k(f"{op} v{x}, v{x}, v{tmp}")


import struct


def f2h(x):
    return "0x%08x" % struct.unpack("<I", struct.pack("<f", x))[0]


STAMP = False
WS_PROF = 0x4000000


def stamp_begin(k):
    if STAMP:
        k("s_memtime s[72:73]")
        k("s_memrealtime s[84:85]")


def stamp(k, i):
    if STAMP:
        k(f"s_memtime s[{72+2*i}:{73+2*i}]")


def stamp_end(k, idx, wg=0):
    if not STAMP:
        return
    lab = f"STAMP_SKIP_{idx}_{len(k.ins)}"
    import os
    sw = int(os.environ.get(f"STAMPW{idx}", "0"))
    k(f"s_cmp_lg_u32 s3, {sw}")
    k(f"s_cbranch_scc1 {lab}")
    k("s_cmp_ge_u32 s2, 512")
    k(f"s_cbranch_scc1 {lab}")
    k("s_waitcnt vmcnt(0) lgkmcnt(0)")
    k("s_memtime s[82:83]")
    k("s_memrealtime s[86:87]")
    k("s_load_dwordx2 s[88:89], s[0:1], 72")
    k("s_getreg_b32 s92, hwreg(HW_REG_XCC_ID)")
    k("s_getreg_b32 s93, hwreg(HW_REG_HW_ID)")
    k("s_waitcnt lgkmcnt(0)")
    k("s_mov_b32 s90, 0x10000000")
    k("s_mov_b32 s91, 0x00020000")
    k("s_lshl_b32 s94, s2, 6")
    k(f"s_add_u32 s94, s94, {WS_PROF + idx*512*64}")
    vals = [84, 86, 72, 74, 76, 78, 80, 82]
    for j, r in enumerate(vals):
        k(f"v_mov_b32 v{2+j}, s{r}")
    k("v_mov_b32 v10, s92")
    k("v_mov_b32 v11, s93")
    k("v_mov_b32 v12, 0")
    k("buffer_store_dwordx4 v[2:5], v12, s[88:91], s94 offen")
    k("buffer_store_dwordx4 v[6:9], v12, s[88:91], s94 offen offset:16")
    k("buffer_store_dwordx2 v[10:11], v12, s[88:91], s94 offen offset:32")
    k("s_waitcnt vmcnt(0)")
    k(f"{lab}:")
```

```python
from kb import Kern, Inst


def T(text, **tags):
    return Inst(text, dict(tags))


class Loop:
    def __init__(self, name, n, KS, R, nd, reads, mfmas, dma, cnt_sreg, rpos=None, dpos=None, extra=None,
                 prio=None, vm_extra=None):
        self.name, self.n, self.KS, self.R, self.nd = name, n, KS, R, nd
        self.reads, self.mfmas, self.dma = reads, mfmas, dma
        self.cnt = cnt_sreg
        self.rpos = rpos
        self.dpos = dpos
        self.extra = extra
        self.prio = prio
        self.vm_extra = vm_extra or {}
        self.nm = len(mfmas(0))

    def wait(self, vm=None, lg=None):
        parts = []
        if vm is not None:
            parts.append(f"vmcnt({vm})")
        if lg is not None:
            parts.append(f"lgkmcnt({lg})")
        return T("s_waitcnt " + " ".join(parts))

    def prologue_dma(self, k, first=0, last=None):
        for st in range(first, min(self.R - 1, self.n) if last is None else last):
            for g in self.dma(st % self.R, st):
                k.add(g)

    def prologue_sync(self, k):
        nout = min(self.R - 1, self.n) - 1
        k.add([self.wait(vm=nout * self.nd + self.vm_extra.get(0, 0)), T("s_barrier")])
        k.add(self.reads(0, 0, 0, 0))
        if self.R - 1 < self.n:
            for rel, p, su, rest in self._dma_items(self.R - 1):
                if rel == 0:
                    k.add(su + rest)

    def _dma_items(self, st):
        groups = self.dma(st % self.R, st)
        items = []
        for g in groups:
            cur = []
            for x in g:
                cur.append(x)
                if x.tags.get("dma"):
                    items.append(cur)
                    cur = []
            if cur:
                items[-1] = items[-1] + cur
        out = []
        nm = self.nm
        for i, it in enumerate(items):
            p = self.dpos(i, len(items), nm)
            assert 0 <= p < self.KS * nm, (p, self.KS, nm)
            su = [x for x in it if not x.tags.get("dma") and not x.tags.get("bump")]
            rest = [x for x in it if x.tags.get("dma") or x.tags.get("bump")]
            out.append((p // nm, p % nm, su, rest))
        return out

    def step(self, k, st, ks, static_st):
        KS, R, n, nd = self.KS, self.R, self.n, self.nd
        t = static_st * KS + ks
        buf = t & 1
        slot = static_st % R
        last = (ks == KS - 1)
        mf = self.mfmas(buf)
        nm = len(mf)
        fill = [[] for _ in range(nm)]
        pre = []
        has_next = not (last and static_st == n - 1)
        if last and static_st + 1 < n:
            nout = min(n - 1, static_st + R - 1) - (static_st + 1)
            pre = [self.wait(vm=nout * nd + self.vm_extra.get(static_st + 1, 0), lg=0), T("s_barrier")]
        else:
            pre = [self.wait(lg=0)]
        if has_next:
            if last:
                rd = self.reads((static_st + 1) % R, 0, buf ^ 1, static_st + 1)
            else:
                rd = self.reads(slot, ks + 1, buf ^ 1, static_st)
            for i, x in enumerate(rd):
                p = self.rpos(i, len(rd), nm) if self.rpos else min(i, nm - 1)
                fill[min(p, nm - 1)].append(x)
        return pre, mf, fill

    def emit_stage(self, k, static_st):
        KS, R, n = self.KS, self.R, self.n
        for ks in range(KS):
            pre, mf, fill = self.step(k, None, ks, static_st)
            nm = len(mf)
            if ks == KS - 1:
                tgt, rel = static_st + R, 0
            else:
                tgt, rel = static_st - 1 + R, ks + 1
            if tgt < n:
                for r, p, su, rest in self._dma_items(tgt):
                    if r != rel:
                        continue
                    if su and p > 0:
                        fill[p - 1].extend(su)
                        fill[p].extend(rest)
                    else:
                        fill[p].extend(su + rest)
            if self.extra:
                for p, x in self.extra(static_st, ks):
                    fill[min(p, nm - 1)].append(x)
            k.add(pre)
            for i, m in enumerate(mf):
                k.add([m])
                k.add(fill[i])

    def period(self):
        p = self.R
        if (self.R * self.KS) % 2:
            p *= 2
        return p

    def emit(self, k, unrolled=False):
        n, R = self.n, self.R
        P = self.period()
        iters = max(0, (n - R) // P)
        if unrolled or iters <= 1:
            for st in range(n):
                self.emit_stage(k, st)
            return
        lab = f"L_{self.name}_loop"
        k(f"s_mov_b32 s{self.cnt}, {iters}")
        k(f"{lab}:")
        for st in range(P):
            self.emit_stage(k, st)
        k(f"s_sub_u32 s{self.cnt}, s{self.cnt}, 1")
        k(f"s_cmp_lg_u32 s{self.cnt}, 0")
        k(f"s_cbranch_scc1 {lab}")
        for st in range(iters * P, n):
            self.emit_stage(k, st)
```

```python
from common import *
from gemm import T, Loop
from k_prep import wave_lane
import math, os
OPT = os.environ.get('K1OPT', '').split(',')

K1_R = 3
SLOT1 = 40960
CSL1 = K1_R * SLOT1
STL1 = CSL1 + 1536
LDS1 = STL1 + 1024
POLL_MAX = 2000


def stats_body(k, X, bar=None):
    A = 4
    TM = 12
    def dpp_reduce(r):
        k(f"v_add_f32_dpp v{r}, v{r}, v{r} quad_perm:[1,0,3,2] row_mask:0xf bank_mask:0xf")
        k(f"v_add_f32_dpp v{r}, v{r}, v{r} quad_perm:[2,3,0,1] row_mask:0xf bank_mask:0xf")
        k(f"v_add_f32_dpp v{r}, v{r}, v{r} row_half_mirror row_mask:0xf bank_mask:0xf")
    def fold():
        for i in range(2):
            k(f"v_pk_add_f32 v[{A+2*i}:{A+2*i+1}], v[{A+2*i}:{A+2*i+1}], v[{A+4+2*i}:{A+5+2*i}]")
        k(f"v_pk_add_f32 v[{A}:{A+1}], v[{A}:{A+1}], v[{A+2}:{A+3}]")
        k(f"v_add_f32 v{A}, v{A}, v{A+1}")
        dpp_reduce(A)
    for i in range(8):
        k(f"v_mov_b32 v{A+i}, 0")
    for d in range(64):
        t = TM + 2 * (d & 1)
        a = A + 2 * (d & 3)
        if 'novalu' not in OPT:
            k(f"v_lshlrev_b32 v{t}, 16, v{X+d}")
            k(f"v_and_b32 v{t+1}, 0xffff0000, v{X+d}")
            k(f"v_pk_add_f32 v[{a}:{a+1}], v[{a}:{a+1}], v[{t}:{t+1}]")
        if d == 31 and bar:
            bar(0)
    fold()
    k(f"v_mul_f32 v2, {f2h(-1.0/1024)}, v{A}")
    if bar:
        bar(1)
    for i in range(8):
        k(f"v_mov_b32 v{A+i}, 0")
    for d in range(64):
        t = TM + 2 * (d & 1)
        a = A + 2 * (d & 3)
        if 'novalu' not in OPT:
            k(f"v_lshlrev_b32 v{t}, 16, v{X+d}")
            k(f"v_and_b32 v{t+1}, 0xffff0000, v{X+d}")
            k(f"v_pk_add_f32 v[{t}:{t+1}], v[{t}:{t+1}], v[2:3] op_sel_hi:[1,0]")
            k(f"v_pk_fma_f32 v[{a}:{a+1}], v[{t}:{t+1}], v[{t}:{t+1}], v[{a}:{a+1}]")
        if d == 31 and bar:
            bar(2)
    fold()
    k(f"v_mov_b32 v3, {f2h(1e-5)}")
    k(f"v_fmac_f32 v3, {f2h(1.0/1024)}, v{A}")
    k("v_rsq_f32 v3, v3")


class TL:
    n = 0
    names = []

def tl(k, name):
    if 'tl' not in OPT:
        return
    r = 50 + 2 * TL.n
    TL.n += 1
    TL.names.append(name)
    k(f"s_memtime s[{r}:{r+1}]")

def tl_end(k):
    if 'tl' not in OPT:
        return
    k("s_waitcnt lgkmcnt(0)")
    for i in range(TL.n):
        k(f"v_writelane_b32 v100, s{50+2*i}, {i}")
    k("v_lshlrev_b32 v101, 2, v0")
    k("s_lshl_b32 s39, s2, 8")
    k(f"s_add_u32 s39, s39, {WS_PROF + 0x200000}")
    k("buffer_store_dword v100, v101, s[8:11], s39 offen")
    print("TL names:", TL.names)
    open('tl_names.txt', 'w').write(",".join(TL.names))


def emit_helper(k):
    X = 16
    TL.n = 0
    TL.names = []
    _k = k
    class KW:
        def __call__(self, text, **kw):
            _k(text, **kw)
            if text.strip() == "s_barrier":
                tl(_k, "bar")
            elif text.strip().startswith("s_waitcnt vmcnt") and TL.n < 29:
                tl(_k, "W")
        def add(self, l): _k.add(l)
    k = KW()
    k("K1_HELP:")
    tl(_k, "start")
    load_srds(k, [(4, KA_WQKV, 1024 * 3072 * 2), (8, KA_WS, WS_SIZE), (12, KA_X, 2048 * 1024 * 2),
                  (24, KA_DBG, 256)])
    tile_coords(k)
    k("s_lshl_b32 s21, s18, 7")
    k("s_lshl_b32 s22, s19, 3")
    k("s_add_u32 s22, s22, s21")
    k("s_lshl_b32 s23, s22, 11")
    k("v_lshrrev_b32 v1, 3, v0")
    k("v_lshlrev_b32 v17, 11, v1")
    k("v_and_b32 v18, 7, v0")
    k("v_lshl_add_u32 v81, v18, 4, v17")
    for i in range(16):
        k(f"buffer_load_dwordx4 v[{X+4*i}:{X+4*i+3}], v81, s[12:15], s23 offen offset:{128*i}")
    k("s_and_b32 s28, s17, 7")
    k("s_lshr_b32 s29, s17, 3")
    k("v_lshrrev_b32 v82, 5, v0")
    k("v_lshlrev_b32 v82, 6, v82")
    k("v_and_b32 v83, 7, v0")
    k("v_add_u32 v82, v82, v83")
    k("s_lshl_b32 s30, s28, 3")
    k("v_add_u32 v82, s30, v82")
    k("s_movk_i32 s30, 6144")
    k("v_mul_lo_u32 v82, v82, s30")
    k("v_bfe_u32 v83, v0, 3, 2")
    k("v_lshl_add_u32 v82, v83, 11, v82")
    k("v_cmp_eq_u32 vcc, 3, v83")
    k("v_mov_b32 v84, 0x7fff0000")
    k("v_cndmask_b32 v82, v82, v84, vcc")
    k("s_lshl_b32 s30, s19, 7")
    k(f"s_add_u32 s30, s30, {2*64*6144}")
    k("v_and_b32 v83, 31, v0")
    k("s_lshl_b32 s31, s29, 5")
    k("s_add_u32 s31, s31, s21")
    k("v_add_u32 v83, s31, v83")
    k("v_lshlrev_b32 v83, 11, v83")
    k("v_lshrrev_b32 v84, 5, v0")
    k("v_lshl_add_u32 v83, v84, 7, v83")
    k("s_movk_i32 s31, 256")

    def pf():
        if 'nopf' in OPT:
            return
        k("buffer_load_dword v85, v82, s[4:7], s30 offen")
        k("buffer_load_dword v86, v83, s[12:15], s31 offen")
        k(f"s_add_u32 s30, s30, {128*6144}")
        k("s_add_u32 s31, s31, 256")

    pf()
    k("v_and_b32 v87, 7, v0")
    k("v_cmp_eq_u32 vcc, 0, v87")
    k("v_lshlrev_b32 v87, 3, v1")
    k("v_mov_b32 v88, 0x7fff0000")
    k("v_cndmask_b32 v87, v88, v87, vcc")
    k("s_lshl_b32 s32, s22, 3")
    k(f"s_add_u32 s32, s32, {WS_ST1}")
    k("s_lshl_b32 s33, s18, 2")
    k("s_lshl_b32 s34, s21, 3")
    k(f"s_add_u32 s34, s34, {WS_ST1}")
    k("v_lshlrev_b32 v89, 4, v0")
    k("v_lshlrev_b32 v90, 3, v0")
    k(f"v_add_u32 v90, {STL1}, v90")
    k("v_mov_b32 v91, 0")
    k("v_mov_b32 v92, 1")
    k("s_mov_b32 s35, 0")
    k("s_mov_b32 s36, 0")

    k("s_barrier")
    pf()
    k("s_waitcnt vmcnt(%d)" % (0 if 'nopf' in OPT else 4))

    def bar(i):
        k("s_barrier")
        if i == 0:
            pf()
        if i == 2:
            pf()
    stats_body(k, X, bar)
    k("buffer_store_dwordx2 v[2:3], v87, s[8:11], s32 offen sc1")
    k("s_barrier")
    k("s_barrier")
    k("s_waitcnt vmcnt(0)")
    k("s_mov_b64 exec, 1")
    if 'noatom' not in OPT:
        k("buffer_atomic_add v92, v91, s[24:27], s33 offen")
    k("s_mov_b64 exec, -1")
    pf()
    k("s_barrier")
    k("s_barrier")
    pf()
    k("s_barrier")
    pf()
    k("s_barrier")
    if 'noatom' in OPT:
        k("v_mov_b32 v93, 16")
    else:
        k("buffer_load_dword v93, v91, s[24:27], s33 offen sc1")
    k("s_barrier")
    k("s_barrier")
    k("s_waitcnt vmcnt(0)")
    k("v_readfirstlane_b32 s37, v93")
    k("s_cmp_eq_u32 s37, 16")
    k("s_cbranch_scc0 K1_H_NOTYET")
    k("s_mov_b32 s35, 1")
    k("buffer_load_dwordx4 v[4:7], v89, s[8:11], s34 offen sc1")
    k("s_branch K1_H_B12")
    k("K1_H_NOTYET:")
    k("buffer_load_dword v93, v91, s[24:27], s33 offen sc1")
    k("K1_H_B12:")
    k("s_barrier")
    k("s_barrier")
    k("s_cmp_eq_u32 s35, 1")
    k("s_cbranch_scc1 K1_H_B14")
    k(f"s_movk_i32 s38, {POLL_MAX}")
    k("K1_H_POLL:")
    k("s_waitcnt vmcnt(0)")
    k("v_readfirstlane_b32 s37, v93")
    k("s_cmp_eq_u32 s37, 16")
    k("s_cbranch_scc1 K1_H_GOT")
    k("s_sub_u32 s38, s38, 1")
    k("s_cmp_eq_u32 s38, 0")
    k("s_cbranch_scc1 K1_H_FALLBACK")
    k("s_sleep 4")
    k("buffer_load_dword v93, v91, s[24:27], s33 offen sc1")
    k("s_branch K1_H_POLL")
    k("K1_H_GOT:")
    k("buffer_load_dwordx4 v[4:7], v89, s[8:11], s34 offen sc1")
    k("K1_H_B14:")
    k("s_barrier")
    k("s_barrier")
    k("s_cmp_eq_u32 s36, 1")
    k("s_cbranch_scc1 K1_H_B16")
    k("s_waitcnt vmcnt(0)")
    k("ds_write2_b32 v90, v4, v6 offset0:0 offset1:1")
    k("ds_write2_b32 v90, v5, v7 offset0:128 offset1:129")
    k("K1_H_B16:")
    k("s_waitcnt lgkmcnt(0)")
    k("s_barrier")
    tl_end(_k)
    k("s_endpgm")
    k = _k
    k("K1_H_FALLBACK:")
    k("s_mov_b32 s36, 1")
    k("s_lshl_b32 s23, s21, 11")
    k("s_mov_b32 s38, 16")
    k("v_lshlrev_b32 v94, 2, v1")
    k(f"v_add_u32 v94, {STL1}, v94")
    k("K1_H_FB_LOOP:")
    for i in range(16):
        k(f"buffer_load_dwordx4 v[{X+4*i}:{X+4*i+3}], v81, s[12:15], s23 offen offset:{128*i}")
    k("s_waitcnt vmcnt(0)")
    stats_body(k, X, None)
    k("ds_write_b32 v94, v2")
    k("ds_write_b32 v94, v3 offset:512")
    k("v_add_u32 v94, 32, v94")
    k(f"s_add_u32 s23, s23, {8*2048}")
    k("s_sub_u32 s38, s38, 1")
    k("s_cmp_lg_u32 s38, 0")
    k("s_cbranch_scc1 K1_H_FB_LOOP")
    k("s_branch K1_H_B14")


def tile_coords(k):
    k("s_and_b32 s16, s2, 7")
    k("s_lshr_b32 s17, s2, 3")
    k("s_lshr_b32 s18, s16, 2")
    k("s_lshl_b32 s18, s18, 3")
    k("s_and_b32 s19, s17, 7")
    k("s_add_u32 s18, s18, s19")
    k("s_and_b32 s19, s16, 3")
    k("s_lshl_b32 s19, s19, 2")
    k("s_lshr_b32 s20, s17, 3")
    k("s_add_u32 s19, s19, s20")


def kernel_K1(R=K1_R, unrolled=False, check=False):
    k = Kern("qkv_kernel")
    stamp_begin(k)
    k("s_cmp_ge_u32 s2, 256")
    k("s_cbranch_scc1 K1_END")
    wave_lane(k)
    k("s_cmp_eq_u32 s3, 8")
    k("s_cbranch_scc1 K1_HELP")
    load_srds(k, [(4, KA_WQKV, 1024 * 3072 * 2), (8, KA_WS, WS_SIZE), (12, KA_X, 2048 * 1024 * 2)])
    stamp(k, 3)
    tile_coords(k)
    k("s_and_b32 s21, s3, 3")
    k("s_lshr_b32 s22, s3, 2")
    k("s_lshl_b32 s24, s18, 3")
    k("s_add_u32 s24, s24, s3")
    k("s_lshl_b32 s24, s24, 15")
    k(f"s_mul_i32 s25, s3, {8*6144}")
    k("s_lshl_b32 s26, s19, 7")
    k("s_add_u32 s25, s25, s26")
    k("s_lshl_b32 s26, s3, 11")
    k("s_mul_i32 s27, s3, 3072")
    k("s_add_u32 s27, s27, 16384")
    VL = 1
    VA = 2
    VX = 5
    k(f"v_lshlrev_b32 v{VL}, 4, v0")
    k("v_lshrrev_b32 v8, 3, v0")
    k("v_and_b32 v9, 7, v0")
    k("v_xor_b32 v9, v9, v8")
    k("v_lshlrev_b32 v9, 4, v9")
    k(f"v_lshl_add_u32 v{VX}, v8, 11, v9")
    k(f"v_add_u32 v{VX+1}, {8*2048-1024}, v{VX}")
    k("s_movk_i32 s28, 6144")
    k("v_mul_lo_u32 v10, v8, s28")
    k("v_bfe_u32 v7, v0, 4, 1")
    k("s_and_b32 s29, s3, 1")
    k("s_lshl_b32 s29, s29, 1")
    k("v_or_b32 v7, s29, v7")
    k("v_bfe_u32 v8, v0, 1, 2")
    k("v_xor_b32 v7, v7, v8")
    k("v_lshlrev_b32 v7, 5, v7")
    k("v_and_b32 v8, 1, v0")
    k("v_lshl_add_u32 v7, v8, 4, v7")
    k("v_add_u32 v10, v10, v7")
    for sub in range(3):
        k(f"v_add_u32 v{VA+sub}, {1024*sub}, v10")

    ACC = 32
    FA = ACC + 48
    FB = FA + 48
    CSA = FB + 16
    ONES = CSA + 12
    NV = ONES + 4
    VB = 7
    VT = VB + 2 * R
    assert VT + 2 * R <= 28

    def acc(t, mt):
        return ACC + (t * 2 + mt) * 4

    def reads(slot, ks, buf, st):
        out = []
        for mt in range(2):
            r = FB + buf * 8 + mt * 4
            if 'noB' in OPT: continue
            out.append(T(f"ds_read_b128 v[{r}:{r+3}], v{VB+2*slot+ks} offset:{mt*2048}", use=(("B", slot), st)))
        for t in range(6):
            if 'noA' in OPT: continue
            if 'halfA' in OPT and t >= 3: continue
            sub, i = t >> 1, t & 1
            for h in range(2):
                r = FA + buf * 24 + t * 4 + 2 * h
                out.append(T(f"ds_read_b64_tr_b16 v[{r}:{r+1}], v{VT+2*slot+i} offset:{ks*12288 + sub*1024 + h*512}",
                             use=(("A", slot), st)))
        return out

    def mfmas(buf):
        out = []
        for t in range(6):
            for mt in range(2):
                a = FA + buf * 24 + t * 4
                b = FB + buf * 8 + mt * 4
                c = acc(t, mt)
                if t < 4:
                    out.append(T(f"v_mfma_f32_16x16x32_bf16 v[{c}:{c+3}], v[{a}:{a+3}], v[{b}:{b+3}], v[{c}:{c+3}]"))
                else:
                    out.append(T(f"v_mfma_f32_16x16x32_bf16 v[{c}:{c+3}], v[{b}:{b+3}], v[{a}:{a+3}], v[{c}:{c+3}]"))
        return out

    def dma(slot, st):
        g1 = [T(f"s_add_u32 m0, s26, {slot*SLOT1}")]
        for i in range(2):
            g1.append(T(f"buffer_load_dwordx4 v{VX+i}, s[12:15], s24 offen offset:{1024*i} lds", fill=(("B", slot), st)))
        g1.append(T("s_add_u32 s24, s24, 128", bump=True))
        g2 = [T(f"s_add_u32 m0, s27, {slot*SLOT1}")]
        for sub in range(3):
            g2.append(T(f"buffer_load_dwordx4 v{VA+sub}, s[4:7], s25 offen offset:{1024*sub} lds", fill=(("A", slot), st)))
        g2.append(T(f"s_add_u32 s25, s25, {64*6144}", bump=True))
        if 'nodma' in OPT:
            return [[T("s_nop 0", dma=True)]]
        return [g1, g2]

    nl = [0]

    def extra(st, ks):
        buf = (st * 2 + ks) & 1
        n = nl[0]
        nl[0] += 1
        out = [T(f"s_cmp_lg_u32 s23, {ks}"), T(f"s_cbranch_scc1 K1_CE{n}"), T(f"s_cbranch_vccnz K1_CB{n}")]
        for half in range(2):
            for i in range(3):
                a = FA + buf * 24 + (3 * half + i) * 4
                c = CSA + 4 * i
                out.append(T(f"v_mfma_f32_16x16x32_bf16 v[{c}:{c+3}], v[{a}:{a+3}], v[{ONES}:{ONES+3}], v[{c}:{c+3}]"))
            if half == 0:
                out.append(T(f"s_branch K1_CE{n}"))
                out.append(T(f"K1_CB{n}:"))
        out.append(T(f"K1_CE{n}:"))
        return [(99, x) for x in out]

    L = Loop("k1", 16, 2, R, 5, reads, mfmas, dma, 30,
             rpos=lambda i, nr, nm: (i * nm) // (max(nr,1) + 2),
             dpos=lambda i, nd, nm: 2 + 2 * i, extra=None if 'nocs' in OPT else extra)
    L.prologue_dma(k)
    stamp(k, 4)
    t0, t1, t2, t3 = 28, 29, 30, 31
    k(f"v_and_b32 v{t0}, 15, v0")
    k(f"v_lshrrev_b32 v{t1}, 4, v0")
    k(f"v_and_b32 v{t2}, 7, v0")
    k(f"v_xor_b32 v{t2}, v{t2}, v{t1}")
    k(f"v_lshlrev_b32 v{t2}, 4, v{t2}")
    k(f"v_lshl_add_u32 v{t2}, v{t0}, 7, v{t2}")
    k("s_lshl_b32 s29, s21, 12")
    k(f"v_add_u32 v{VB}, s29, v{t2}")
    k(f"v_xor_b32 v{VB+1}, 64, v{VB}")
    for sl in range(1, R):
        for ks in range(2):
            k(f"v_add_u32 v{VB+2*sl+ks}, {sl*SLOT1}, v{VB+ks}")
    k(f"v_lshrrev_b32 v{t0}, 4, v0")
    k(f"v_mul_u32_u24 v{t1}, 3072, v{t0}")
    k(f"v_bfe_u32 v{t2}, v0, 2, 2")
    k(f"v_lshl_add_u32 v{t1}, v{t2}, 7, v{t1}")
    k(f"v_and_b32 v{t3}, 3, v0")
    k(f"v_lshl_add_u32 v{t1}, v{t3}, 3, v{t1}")
    k(f"v_lshrrev_b32 v{t2}, 1, v{t2}")
    k(f"v_and_b32 v{t0}, 1, v{t0}")
    k(f"v_lshl_add_u32 v{t2}, v{t0}, 1, v{t2}")
    k("s_lshl_b32 s29, s22, 1")
    for i in range(2):
        k(f"v_xor_b32 v{t3}, s29, v{t2}")
        if i:
            k(f"v_xor_b32 v{t3}, 1, v{t3}")
        k(f"v_lshl_add_u32 v{VT+i}, v{t3}, 5, v{t1}")
        k(f"v_add_u32 v{VT+i}, 16384, v{VT+i}")
        for sl in range(1, R):
            k(f"v_add_u32 v{VT+2*sl+i}, {sl*SLOT1}, v{VT+i}")
    k("s_lshr_b32 s23, s21, 1")
    k("s_and_b32 s29, s21, 1")
    k("s_cmp_lg_u32 s29, 0")
    k("s_cselect_b64 vcc, -1, 0")
    for i in range(48):
        k(f"v_mov_b32 v{ACC+i}, 0")
    for i in range(12):
        k(f"v_mov_b32 v{CSA+i}, 0")
    for i in range(4):
        k(f"v_mov_b32 v{ONES+i}, 0x3f803f80")
    L.prologue_sync(k)
    stamp(k, 1)
    L.emit(k, unrolled=unrolled)
    stamp(k, 2)
    k("s_mul_i32 s29, s22, 6")
    k("s_and_b32 s31, s21, 1")
    k("s_mul_i32 s31, s31, 3")
    k("s_add_u32 s29, s29, s31")
    k("s_lshl_b32 s29, s29, 1")
    k("s_add_u32 s29, s29, s23")
    k("s_lshl_b32 s29, s29, 6")
    k(f"s_add_u32 s29, s29, {CSL1}")
    k(f"v_lshrrev_b32 v{t0}, 4, v0")
    k(f"v_and_b32 v{t1}, 15, v0")
    k(f"v_lshlrev_b32 v{t2}, 4, v{t0}")
    k(f"v_add_u32 v{t3}, s29, v{t2}")
    k("s_mov_b32 exec_lo, 0x00010001")
    k("s_mov_b32 exec_hi, 0x00010001")
    for i in range(3):
        k(f"ds_write_b128 v{t3}, v[{CSA+4*i}:{CSA+4*i+3}] offset:{128*i}")
    k("s_mov_b64 exec, -1")
    k("s_lshl_b32 s31, s19, 1")
    k("s_add_u32 s31, s31, s22")
    k("s_lshl_b32 s32, s18, 3")
    k("s_lshl_b32 s33, s21, 1")
    k("s_add_u32 s32, s32, s33")
    k("s_lshl_b32 s33, s31, 7")
    k("s_add_u32 s33, s33, s32")
    k("s_lshl_b32 s33, s33, 10")
    k(f"s_add_u32 s33, s33, {WS_Q}")
    k("s_lshl_b32 s34, s31, 6")
    k("s_lshr_b32 s35, s32, 1")
    k("s_add_u32 s34, s34, s35")
    k("s_lshl_b32 s34, s34, 12")
    k(f"s_add_u32 s34, s34, {WS_KV}")
    k("s_mul_i32 s29, s22, 768")
    k(f"s_add_u32 s29, s29, {CSL1}")
    k(f"v_add_u32 v8, s29, v{t2}")
    k(f"v_lshl_add_u32 v9, v{t1}, 2, s29")
    k("s_lshl_b32 s29, s21, 7")
    k(f"s_add_u32 s29, s29, {STL1}")
    k(f"v_lshl_add_u32 v10, v{t1}, 2, s29")
    k(f"v_add_u32 v11, s29, v{t2}")
    k("s_waitcnt lgkmcnt(0)")
    k("s_barrier")
    C0, C1, CV, QK, VS = FA, FA + 16, FA + 32, FA + 36, FA + 40
    KS_ = FA + 56
    for t in range(4):
        k(f"ds_read_b128 v[{C0+4*t}:{C0+4*t+3}], v8 offset:{128*t}")
        k(f"ds_read_b128 v[{C1+4*t}:{C1+4*t+3}], v8 offset:{128*t+64}")
    for mt in range(2):
        k(f"ds_read_b32 v{KS_+2*mt}, v10 offset:{64*mt}")
        k(f"ds_read_b32 v{KS_+2*mt+1}, v10 offset:{64*mt+512}")
    for t in range(2):
        k(f"ds_read_b32 v{CV+t}, v9 offset:{128*(4+t)}")
        k(f"ds_read_b32 v{CV+2+t}, v9 offset:{128*(4+t)+64}")
    for mt in range(2):
        k(f"ds_read_b128 v[{VS+8*mt}:{VS+8*mt+3}], v11 offset:{64*mt}")
        k(f"ds_read_b128 v[{VS+8*mt+4}:{VS+8*mt+7}], v11 offset:{64*mt+512}")
    qs = (32 ** -0.5) * math.log2(math.e)

    def pr(r):
        return f"v[{r}:{r+1}]"
    k("s_waitcnt lgkmcnt(8)")
    for t in range(4):
        for h in range(2):
            k(f"v_pk_add_f32 {pr(C0+4*t+2*h)}, {pr(C0+4*t+2*h)}, {pr(C1+4*t+2*h)}")
    for mt in range(2):
        k(f"v_mov_b32 v{QK+2*mt}, v{KS_+2*mt}")
        k(f"v_mul_f32 v{QK+2*mt+1}, {f2h(qs)}, v{KS_+2*mt+1}")
    O = C1
    for grp, (sp, base, off) in enumerate(((QK, 33, 0), (KS_, 34, 0))):
        for mt in range(2):
            p = sp + 2 * mt
            for t in range(2):
                c = acc(2 * grp + t, mt)
                cs = C0 + 4 * (2 * grp + t)
                for h in range(2):
                    k(f"v_pk_fma_f32 {pr(c+2*h)}, {pr(cs+2*h)}, {pr(p)}, {pr(c+2*h)} op_sel_hi:[1,0,1]")
            for t in range(2):
                c = acc(2 * grp + t, mt)
                for h in range(2):
                    k(f"v_pk_mul_f32 {pr(c+2*h)}, {pr(c+2*h)}, {pr(p)} op_sel:[0,1] op_sel_hi:[1,1]")
            o = O + 8 * grp + 4 * mt
            for t in range(2):
                c = acc(2 * grp + t, mt)
                k(f"v_cvt_pk_bf16_f32 v{o+2*t}, v{c}, v{c+1}")
                k(f"v_cvt_pk_bf16_f32 v{o+2*t+1}, v{c+2}, v{c+3}")
            k(f"buffer_store_dwordx4 v[{o}:{o+3}], v{VL}, s[8:11], s{base} offen offset:{1024*mt}")
    k("s_waitcnt lgkmcnt(0)")
    k(f"v_pk_add_f32 {pr(CV)}, {pr(CV)}, {pr(CV+2)}")
    O3 = C0
    for t in range(2):
        sel = f"op_sel:[0,{t},0] op_sel_hi:[1,{t},1]"
        for mt in range(2):
            c = acc(4 + t, mt)
            for h in range(2):
                k(f"v_pk_fma_f32 {pr(c+2*h)}, {pr(VS+8*mt+2*h)}, {pr(CV)}, {pr(c+2*h)} {sel}")
        for mt in range(2):
            c = acc(4 + t, mt)
            for h in range(2):
                k(f"v_pk_mul_f32 {pr(c+2*h)}, {pr(c+2*h)}, {pr(VS+8*mt+4+2*h)}")
        for mt in range(2):
            c = acc(4 + t, mt)
            k(f"v_cvt_pk_bf16_f32 v{O3+4*t+2*mt}, v{c}, v{c+1}")
            k(f"v_cvt_pk_bf16_f32 v{O3+4*t+2*mt+1}, v{c+2}, v{c+3}")
        k(f"buffer_store_dwordx4 v[{O3+4*t}:{O3+4*t+3}], v{VL}, s[8:11], s34 offen offset:{2048+1024*t}")
    k("K1_END:")
    stamp_end(k, 1)
    k("s_endpgm")
    if check:
        check_trace(k.ins, "K1")
        return None
    emit_helper(k)
    k.fix_hazards()
    return dict(name="qkv_kernel", grid=256, block=576, lds=LDS1, kern=k, vgpr=NV, sgpr=96)
```

```python
from common import *
from gemm import T
from k_prep import wave_lane
from k2pack import emit_pack_waves, PBASE

import os
K2OPT = os.environ.get('K2OPT', '').split(',')
R2 = 4
LDS2 = 65536 + 256 + 65536
FLAG = 65536

ORDER = ("W M1 e0 e1 SYNC rK0 e2 e3 W M5 e4 e5 rV1 c0 c1 e6 W M2 e7 e8 rK1 c2 c3 e9 "
         "M6 e10 e11 W M3 e12 e13 rV0 e14 e15 M4 c4 c5 c6 c7").split()


def kernel_K2(unrolled=False, check=False, order=ORDER, extra_setup=None):
    k = Kern("attn_kernel")
    stamp_begin(k)
    k("s_cmp_ge_u32 s2, 256")
    k("s_cbranch_scc1 K2_END")
    wave_lane(k)
    k("s_cmp_ge_u32 s3, 8")
    k("s_cbranch_scc1 K2_PACK")
    load_srds(k, [(8, KA_WS, WS_SIZE)])
    stamp(k, 3)
    k("s_and_b32 s16, s2, 7")
    k("s_lshr_b32 s17, s2, 3")
    k("s_lshl_b32 s18, s16, 2")
    k("s_and_b32 s19, s17, 3")
    k("s_add_u32 s18, s18, s19")
    k("s_lshr_b32 s19, s17, 2")
    k("s_lshl_b32 s20, s18, 7")
    k("s_lshl_b32 s21, s19, 4")
    k("s_add_u32 s20, s20, s21")
    k("s_lshl_b32 s21, s3, 1")
    k("s_add_u32 s20, s20, s21")
    k("s_lshl_b32 s20, s20, 10")
    k(f"s_add_u32 s21, s20, {WS_Q}")
    k(f"s_add_u32 s22, s20, {WS_O}")
    k("s_lshl_b32 s23, s18, 18")
    k(f"s_add_u32 s23, s23, {WS_KV}")
    k("s_lshl_b32 s24, s3, 11")
    k("s_add_u32 s27, s23, s24")
    k("s_mov_b32 s28, 0")
    k("s_mov_b32 s40, 0x07060302")
    VL, VQ, VK = 1, 2, 3
    k(f"v_lshlrev_b32 v{VL}, 4, v0")
    k("v_bfe_u32 v4, v0, 4, 1")
    k("v_lshlrev_b32 v4, 10, v4")
    k("v_lshrrev_b32 v5, 5, v0")
    k("v_lshl_add_u32 v4, v5, 8, v4")
    k("v_and_b32 v6, 15, v0")
    k(f"v_lshl_add_u32 v{VQ}, v6, 4, v4")
    k("v_bfe_u32 v4, v0, 3, 1")
    k("v_lshlrev_b32 v4, 10, v4")
    k("v_lshl_add_u32 v4, v5, 8, v4")
    k("v_bfe_u32 v6, v0, 4, 1")
    k("v_lshl_add_u32 v4, v6, 7, v4")
    k("v_and_b32 v6, 7, v0")
    k(f"v_lshl_add_u32 v{VK}, v6, 4, v4")
    Q, KF, VF, P, ONES, L = 8, 16, 24, 32, 40, 44
    O, C, S = 48, 64, 80
    NV = S + 32
    for p in range(2):
        k(f"buffer_load_dwordx4 v[{Q+4*p}:{Q+4*p+3}], v{VQ}, s[8:11], s21 offen offset:{512*p}")
    k("v_bfe_u32 v4, v0, 2, 1")
    k("v_bfe_u32 v5, v0, 4, 1")
    k("v_xor_b32 v4, v4, v5")
    k("v_and_b32 v5, 3, v0")
    k("v_or_b32 v4, v4, v5")
    k("v_cmp_eq_u32 vcc, 0, v4")
    k("v_mov_b32 v5, 0x3f803f80")
    for d in range(4):
        k(f"v_cndmask_b32 v{ONES+d}, 0, v5, vcc")
    for i in range(16):
        k(f"v_mov_b32 v{C+i}, 0")
    k(f"v_mov_b32 v6, {FLAG}")
    k("v_mov_b32 v7, 0")
    k("ds_write_b32 v6, v7")

    def dma(st):
        slot = st % R2
        return [T("s_add_u32 s26, s27, s25"),
                T(f"s_add_u32 m0, s24, {slot*16384}"),
                T(f"buffer_load_dwordx4 v{VL}, s[8:11], s26 offen lds", fill=(slot, st)),
                T(f"buffer_load_dwordx4 v{VL}, s[8:11], s26 offen offset:1024 lds", fill=(slot, st)),
                T("s_add_u32 s25, s25, 16384"),
                T("s_and_b32 s25, s25, 0x3ffff")]

    def rd(kind, tile, half):
        st, tl = tile >> 2, tile & 3
        slot = st % R2
        if kind == "K":
            r = KF + 4 * half
            return T(f"ds_read_b128 v[{r}:{r+3}], v{VK} offset:{slot*16384 + tl*4096 + 512*half}", use=(slot, st))
        r = VF + 4 * half
        return T(f"ds_read_b128 v[{r}:{r+3}], v{VQ} offset:{slot*16384 + tl*4096 + 2048 + 512*half}", use=(slot, st))

    def m32(d, a, b, c):
        return T(f"v_mfma_f32_32x32x16_bf16 v[{d}:{d+15}], v[{a}:{a+3}], v[{b}:{b+3}], v[{c}:{c+15}]")

    def m16(d, a, b):
        return T(f"v_mfma_f32_16x16x32_bf16 v[{d}:{d+3}], v[{a}:{a+3}], v[{b}:{b+3}], v[{d}:{d+3}]")

    def iteration(i):
        cur = S + 16 * (i & 1)
        nxt = S + 16 * ((i + 1) & 1)
        for tok in order:
            if tok == "W":
                k("s_waitcnt lgkmcnt(3)")
            elif tok == "M1":
                k.add([m32(nxt, KF, Q, C)])
            elif tok == "M2":
                k.add([m32(nxt, KF + 4, Q + 4, nxt)])
            elif tok == "M3":
                k.add([m32(O, VF, P, O)])
            elif tok == "M4":
                k.add([m16(L, ONES, P)])
            elif tok == "M5":
                k.add([m32(O, VF + 4, P + 4, O)])
            elif tok == "M6":
                k.add([m16(L, ONES, P + 4)])
            elif tok == "SYNC":
                if i % 4 == 2:
                    k(f"s_waitcnt vmcnt({(R2-3)*2})")
                    k("s_barrier")
                    k.add(dma((i >> 2) + R2 - 1))
            elif tok == "rK0":
                k.add([rd("K", i + 2, 0)])
            elif tok == "rK1":
                k.add([rd("K", i + 2, 1)])
            elif tok == "rV0":
                k.add([rd("V", i + 1, 0)])
            elif tok == "rV1":
                k.add([rd("V", i, 1)])
            elif tok[0] == "e":
                j = int(tok[1:])
                k(f"v_exp_f32 v{cur+j}, v{cur+j}")
            elif tok[0] == "c":
                j = int(tok[1:])
                if 'cvt' in K2OPT:
                    k(f"v_cvt_pk_bf16_f32 v{P+j}, v{cur+2*j}, v{cur+2*j+1}")
                else:
                    k(f"v_perm_b32 v{P+j}, v{cur+2*j+1}, v{cur+2*j}, s40")
            else:
                raise ValueError(tok)

    k("K2_RUN:")
    k("s_mov_b32 s25, 0")
    for st in range(R2 - 1):
        k.add(dma(st))
    stamp(k, 4)
    for i in range(16):
        k(f"v_mov_b32 v{O+i}, 0")
    for i in range(4):
        k(f"v_mov_b32 v{L+i}, 0")
        k(f"v_mov_b32 v{P+4+i}, 0")
        k(f"v_mov_b32 v{VF+4+i}, 0")
    k(f"s_waitcnt vmcnt({(R2-2)*2}) lgkmcnt(0)")
    k("s_barrier")
    k.add([rd("K", 0, 0), rd("K", 0, 1)])
    k("s_waitcnt lgkmcnt(0)")
    k.add([m32(S, KF, Q, C), m32(S, KF + 4, Q + 4, S)])
    k.add([rd("K", 1, 0), rd("K", 1, 1), rd("V", 0, 0)])
    k("s_waitcnt lgkmcnt(0)")
    stamp(k, 1)
    if unrolled:
        for i in range(64):
            iteration(i)
    else:
        k("s_mov_b32 s30, 4")
        k("K2_LOOP:")
        for i in range(16):
            iteration(i)
        k("s_sub_u32 s30, s30, 1")
        k("s_cmp_lg_u32 s30, 0")
        k("s_cbranch_scc1 K2_LOOP")
    stamp(k, 2)
    k("s_waitcnt vmcnt(0) lgkmcnt(0)")
    k.add([m32(O, VF + 4, P + 4, O), m16(L, ONES, P + 4)])
    k(f"v_rcp_f32 v4, v{L}")
    tmp = S
    for i in range(16):
        k(f"v_mul_f32 v{tmp+i}, v{O+i}, v4")
    for i in range(8):
        k(f"v_cvt_pk_bf16_f32 v{P+i}, v{tmp+2*i}, v{tmp+2*i+1}")
    for c in range(2):
        k(f"buffer_store_dwordx4 v[{P+4*c}:{P+4*c+3}], v{VQ}, s[8:11], s22 offen offset:{512*c}")
    k("s_cmp_lg_u32 s28, 0")
    k("s_cbranch_scc1 K2_END")
    k("v_mov_b32 v5, 0")
    for i in range(16):
        k(f"v_fmac_f32 v5, 0, v{O+i}")
    k(f"v_mov_b32 v6, {f2h(2.0**-60)}")
    k(f"v_mov_b32 v7, {f2h(2.0**60)}")
    k(f"v_cmp_nle_f32 vcc, v6, v{L}")
    k(f"v_cmp_nle_f32 s[32:33], v{L}, v7")
    k("v_cmp_u_f32 s[34:35], v5, v5")
    k("s_or_b64 vcc, vcc, s[32:33]")
    k("s_or_b64 vcc, vcc, s[34:35]")
    k(f"v_mov_b32 v6, {FLAG}")
    k("s_cbranch_vccz K2_NOFLAG")
    k("v_mov_b32 v7, 1")
    k("ds_write_b32 v6, v7")
    k("K2_NOFLAG:")
    k("s_waitcnt lgkmcnt(0)")
    k("s_barrier")
    k("ds_read_b32 v7, v6")
    k("s_waitcnt lgkmcnt(0)")
    k("v_readfirstlane_b32 s31, v7")
    k("s_cmp_eq_u32 s31, 0")
    k("s_cbranch_scc1 K2_END")
    k("s_mov_b32 s28, 1")
    k("s_mov_b32 s29, s23")
    k("s_mov_b32 s30, 64")
    k("v_mov_b32 v4, 0xff800000")
    k("K2_MAXLOOP:")
    for p in range(2):
        k(f"buffer_load_dwordx4 v[{KF+4*p}:{KF+4*p+3}], v{VK}, s[8:11], s29 offen offset:{512*p}")
    k("s_add_u32 s29, s29, 4096")
    k("s_waitcnt vmcnt(0)")
    k(f"v_mfma_f32_32x32x16_bf16 v[{S}:{S+15}], v[{KF}:{KF+3}], v[{Q}:{Q+3}], 0")
    k.add([m32(S, KF + 4, Q + 4, S)])
    for i in range(8):
        k(f"v_max3_f32 v4, v4, v{S+2*i}, v{S+2*i+1}")
    k("s_sub_u32 s30, s30, 1")
    k("s_cmp_lg_u32 s30, 0")
    k("s_cbranch_scc1 K2_MAXLOOP")
    k("v_mov_b32 v5, v4")
    k("v_permlane32_swap_b32 v4, v5")
    k("v_max_f32 v4, v4, v5")
    for i in range(16):
        k(f"v_sub_f32 v{C+i}, 0, v4")
    k("s_branch K2_RUN")
    k("K2_END:")
    stamp_end(k, 2)
    k("s_endpgm")
    emit_pack_waves(k)
    if check:
        idx = [i for i, x in enumerate(k.ins) if x.text.startswith("s_cmp_lg_u32 s28")][0]
        check_trace(k.ins[:idx], "K2")
        return None
    k.fix_hazards()
    return dict(name="attn_kernel", grid=256, block=768, lds=LDS2, kern=k, vgpr=NV, sgpr=96)
```

```python
from common import *
import os

PBASE = 65536 + 256


def emit_pack_waves(k, nbar_total=18):
    k("K2_PACK:")
    load_srds(k, [(8, KA_WS, WS_SIZE), (12, KA_WG, 1024 * 3584 * 2), (16, KA_WU, 1024 * 3584 * 2),
                  (20, KA_WD, 3584 * 1024 * 2), (24, KA_WO, 1024 * 1024 * 2), (56, KA_X, 2048 * 1024 * 2)], tmp=60)
    k("s_sub_u32 s3, s3, 8")
    k("s_lshr_b32 s28, s2, 2")
    k("s_and_b32 s29, s3, 1")
    k("s_lshl_b32 s30, s28, 1")
    k("s_add_u32 s30, s30, s29")
    k("s_and_b32 s31, s2, 3")
    k("s_lshl_b32 s31, s31, 1")
    k("s_lshr_b32 s32, s3, 1")
    k("s_add_u32 s31, s31, s32")
    k("s_lshl_b32 s32, s31, 2")
    k("v_lshrrev_b32 v1, 2, v0")
    k("s_movk_i32 s33, 7168")
    k("v_mul_lo_u32 v1, v1, s33")
    k("v_bfe_u32 v2, v0, 4, 1")
    k("v_lshlrev_b32 v2, 1, v2")
    k("v_and_b32 v3, 3, v0")
    k("v_xor_b32 v2, v2, v3")
    k("v_lshl_add_u32 v1, v2, 4, v1")
    k(f"v_add_u32 v2, {16*7168-1024}, v1")
    k(f"s_mul_i32 s34, s32, {32*7168}")
    k("s_lshl_b32 s33, s30, 6")
    k("s_add_u32 s34, s34, s33")
    k("s_lshl_b32 s35, s3, 14")
    k(f"s_add_u32 s35, s35, {PBASE}")
    k("s_mul_i32 s37, s30, 9363")
    k("s_lshr_b32 s37, s37, 16")
    k("s_mul_i32 s38, s37, 7")
    k("s_sub_u32 s38, s30, s38")
    k("s_lshl_b32 s39, s37, 1")
    k("s_cmp_ge_u32 s38, 4")
    k("s_cselect_b32 s40, 1, 0")
    k("s_add_u32 s40, s39, s40")
    k("s_cmp_ge_u32 s38, 4")
    k("s_cselect_b32 s41, 4, 0")
    k("s_sub_u32 s41, s38, s41")
    k("s_lshl_b32 s41, s41, 2")
    k("s_add_u32 s42, s41, 2")
    k("s_mov_b32 s43, s40")
    k("s_cmp_eq_u32 s38, 3")
    k("s_cselect_b32 s42, 12, s42")
    k("s_add_u32 s44, s39, 1")
    k("s_cmp_eq_u32 s38, 3")
    k("s_cselect_b32 s43, s44, s43")
    k("s_mul_i32 s45, s32, 14")
    for (d, cc, qq) in ((46, 40, 41), (47, 43, 42)):
        k(f"s_mul_i32 s44, s{cc}, 448")
        k(f"s_add_u32 s44, s44, s{qq}")
        k("s_add_u32 s44, s44, s45")
        k("s_lshl_b32 s44, s44, 10")
        k(f"s_add_u32 s{d}, s44, {WS_WGU}")
    k("s_mul_i32 s45, s31, 448")
    for (d, cc, qq) in ((48, 40, 41), (49, 43, 42)):
        k(f"s_mul_i32 s44, s{cc}, 14")
        k(f"s_add_u32 s44, s44, s{qq}")
        k("s_add_u32 s44, s44, s45")
        k("s_lshl_b32 s44, s44, 6")
        k(f"s_add_u32 s{d}, s44, {WS_CS}")
    k("v_lshrrev_b32 v3, 2, v0")
    k("v_lshlrev_b32 v3, 6, v3")
    k("v_bfe_u32 v4, v0, 4, 1")
    k("v_lshlrev_b32 v4, 1, v4")
    k("v_bfe_u32 v5, v0, 1, 1")
    k("v_xor_b32 v4, v4, v5")
    k("v_lshl_add_u32 v3, v4, 4, v3")
    k("v_and_b32 v4, 1, v0")
    k("v_lshl_add_u32 v3, v4, 3, v3")
    k("v_xor_b32 v4, 32, v3")
    k("v_add_u32 v3, s35, v3")
    k("v_add_u32 v4, s35, v4")
    k("v_lshlrev_b32 v5, 4, v0")
    k("v_and_b32 v6, 15, v0")
    k("v_cmp_eq_u32 vcc, 0, v6")
    k("v_lshrrev_b32 v6, 4, v0")
    k("v_lshlrev_b32 v6, 4, v6")
    k("v_mov_b32 v7, 0x7fff0000")
    k("v_cndmask_b32 v6, v7, v6, vcc")
    for d in range(4):
        k(f"v_mov_b32 v{8+d}, 0x3f803f80")
    CS = 12
    for i in range(16):
        k(f"v_mov_b32 v{CS+i}, 0")
    FR = 28
    PF = 44
    k("s_mul_i32 s50, s2, 224")
    k("s_mul_i32 s51, s3, 56")
    k("s_add_u32 s50, s50, s51")
    k(f"v_add_u32 v{PF}, s50, v0")
    k(f"v_lshlrev_b32 v{PF}, 7, v{PF}")
    k("s_lshr_b32 s50, s2, 3")
    k("s_lshl_b32 s50, s50, 5")
    k("s_lshl_b32 s51, s3, 3")
    k("s_add_u32 s50, s50, s51")
    k(f"v_lshrrev_b32 v{PF+1}, 3, v0")
    k(f"v_add_u32 v{PF+1}, s50, v{PF+1}")
    k(f"v_lshlrev_b32 v{PF+1}, 11, v{PF+1}")
    k(f"v_and_b32 v{PF+2}, 7, v0")
    k(f"v_lshl_add_u32 v{PF+1}, v{PF+2}, 7, v{PF+1}")
    k("s_and_b32 s50, s2, 1")
    k("s_lshl_b32 s50, s50, 10")
    k("s_and_b32 s53, s2, 7")
    k("s_lshr_b32 s53, s53, 1")
    k("s_lshl_b32 s53, s53, 9")
    k("s_lshr_b32 s54, s2, 3")
    k("s_lshl_b32 s54, s54, 4")
    k("s_add_u32 s53, s53, s54")
    k("s_lshl_b32 s54, s3, 2")
    k("s_add_u32 s53, s53, s54")
    k("s_lshl_b32 s53, s53, 11")
    k("s_add_u32 s53, s53, s50")
    k(f"v_bfe_u32 v{PF+5}, v0, 3, 2")
    k(f"v_lshlrev_b32 v{PF+5}, 11, v{PF+5}")
    k(f"v_lshl_add_u32 v{PF+5}, v{PF+2}, 7, v{PF+5}")
    k("s_cmp_lt_u32 s2, 224")
    k("s_cselect_b32 s52, 1, 0")

    nlab = [0]

    def guarded(fn):
        lab = f"K2_PK_{nlab[0]}"
        nlab[0] += 1
        k("s_cmp_eq_u32 s52, 0")
        k(f"s_cbranch_scc1 {lab}")
        fn()
        k(f"{lab}:")

    def issue(sb):
        def f():
            for mat in range(2):
                k(f"s_add_u32 m0, s35, {sb*4096 + mat*2048}")
                srd = 12 + 4 * mat
                k(f"buffer_load_dwordx4 v1, s[{srd}:{srd+3}], s34 offen lds")
                k(f"buffer_load_dwordx4 v2, s[{srd}:{srd+3}], s34 offen offset:1024 lds")
            k(f"s_add_u32 s34, s34, {32*7168}")
        guarded(f)

    def process(sb, vm, last=False):
        def f():
            k(f"s_waitcnt vmcnt({vm})")
            for e in range(2):
                for mat in range(2):
                    r = FR + 4 * (2 * e + mat)
                    for h in range(2):
                        k(f"ds_read_b64_tr_b16 v[{r+2*h}:{r+2*h+1}], v{3+e} offset:{sb*4096 + mat*2048 + h*1024}")
            for e in range(2):
                k(f"s_waitcnt lgkmcnt({4*(1-e)})")
                for mat in range(2):
                    r = FR + 4 * (2 * e + mat)
                    k(f"buffer_store_dwordx4 v[{r}:{r+3}], v5, s[8:11], s{46+e} offen offset:{1024*mat}")
                for mat in range(2):
                    r = FR + 4 * (2 * e + mat)
                    c = CS + 4 * (2 * e + mat)
                    k(f"v_mfma_f32_16x16x32_bf16 v[{c}:{c+3}], v[{r}:{r+3}], v[8:11], v[{c}:{c+3}]")
            k(f"s_add_u32 s46, s46, {14*1024}")
            k(f"s_add_u32 s47, s47, {14*1024}")
            if last:
                for e in range(2):
                    for mat in range(2):
                        c = CS + 4 * (2 * e + mat)
                        k(f"buffer_store_dwordx4 v[{c}:{c+3}], v6, s[8:11], s{48+e} offen offset:{64*mat}")
        guarded(f)

    after = {
        1: lambda: issue(0),
        3: lambda: issue(1),
        4: lambda: process(0, 4),
        5: lambda: issue(2),
        6: lambda: process(1, 8),
        7: lambda: issue(3),
        8: lambda: process(2, 8),
        10: lambda: process(3, 4, last=True),
        11: lambda: k(f"buffer_load_dword v{PF+3}, v{PF}, s[20:23], 0 offen"),
        13: lambda: k(f"buffer_load_dword v{PF+4}, v{PF+1}, s[24:27], s50 offen"),
        14: lambda: k(f"buffer_load_dword v{PF+6}, v{PF+5}, s[56:59], s53 offen") if 'nopfx' not in os.environ.get('K2OPT', '') else None,
    }
    for b in range(16):
        k("s_barrier")
        if b in after:
            after[b]()
    k("s_endpgm")
```

```python
from common import *
from gemm import T, Loop
from k_prep import wave_lane

import os
OPT = os.environ.get('K5OPT', '').split(',')
SLOT = 49152
R35 = 3
PF3_LINES = int(os.environ.get('PF3_LINES', '35'))


def _common(name, which, R, unrolled):
    k = Kern(name)
    stamp_begin(k)
    E = f"{which}_END"
    k("s_cmp_ge_u32 s2, 256")
    k(f"s_cbranch_scc1 {E}")
    if which == "K3":
        srds = [(4, KA_WO, 1024 * 1024 * 2), (8, KA_WS, WS_SIZE), (12, KA_X, 2048 * 1024 * 2)]
        nst, WB = 8, WS_O
    else:
        srds = [(4, KA_WD, 3584 * 1024 * 2), (8, KA_WS, WS_SIZE), (12, KA_OUT, 2048 * 1024 * 2)]
        nst, WB = 28, WS_HH
    karg_issue(k, srds)
    wave_lane(k)
    k("s_and_b32 s16, s2, 7")
    k("s_lshr_b32 s17, s2, 3")
    k("s_lshr_b32 s18, s16, 1")
    k("s_lshl_b32 s18, s18, 2")
    k("s_and_b32 s19, s17, 3")
    k("s_add_u32 s18, s18, s19")
    k("s_and_b32 s19, s16, 1")
    k("s_lshl_b32 s19, s19, 3")
    k("s_lshr_b32 s20, s17, 2")
    k("s_add_u32 s19, s19, s20")
    if which == "K5" and 'same' in OPT:
        k("s_and_b32 s18, s18, 0")
        k("s_and_b32 s19, s19, 0")
    if which == "K5" and 'samex' in OPT:
        k("s_and_b32 s18, s18, 12")
        k("s_and_b32 s19, s19, 8")
    k("s_lshl_b32 s24, s3, 7")
    k("s_lshl_b32 s25, s18, 3")
    k("s_add_u32 s24, s24, s25")
    k("s_lshl_b32 s24, s24, 10")
    k(f"s_add_u32 s24, s24, {WB}")
    k("s_lshl_b32 s25, s3, 16")
    k("s_lshl_b32 s26, s19, 7")
    k("s_add_u32 s25, s25, s26")
    k("s_lshl_b32 s26, s3, 13")
    k("s_lshl_b32 s27, s3, 12")
    k("s_add_u32 s27, s27, 32768")
    VL, VA = 1, 2
    k(f"v_lshlrev_b32 v{VL}, 4, v0")
    k("v_lshrrev_b32 v6, 3, v0")
    k("v_lshlrev_b32 v6, 11, v6")
    k("v_bfe_u32 v8, v0, 1, 2")
    k("v_and_b32 v9, 1, v0")
    k("v_lshl_add_u32 v6, v9, 4, v6")
    for p in range(4):
        k("v_bfe_u32 v7, v0, 4, 2")
        k("v_xor_b32 v7, v7, v8")
        k("v_lshl_add_u32 v7, v7, 5, v6")
        k(f"v_add_u32 v{VA+p}, {p*(8*2048-1024)}, v7")
    VB = 6
    VT = VB + R
    t0, t1, t2, t3 = 28, 29, 30, 31
    assert VT + 4 * R <= 28

    def frag_addresses():
        k("s_lshl_b32 s29, s3, 11")
        k(f"v_add_u32 v{VB}, s29, v{VL}")
        for sl in range(1, R):
            k(f"v_add_u32 v{VB+sl}, {sl*SLOT}, v{VB}")
        k(f"v_lshrrev_b32 v{t0}, 4, v0")
        k(f"v_bfe_u32 v{t2}, v0, 2, 2")
        if which == "K3":
            k(f"v_lshrrev_b32 v{t1}, 1, v{t0}")
            k(f"v_lshlrev_b32 v{t1}, 11, v{t1}")
            k(f"v_and_b32 v{t3}, 1, v{t0}")
            k(f"v_lshl_add_u32 v{t1}, v{t3}, 9, v{t1}")
        else:
            k(f"v_lshlrev_b32 v{t1}, 9, v{t0}")
        k(f"v_lshl_add_u32 v{t1}, v{t2}, 7, v{t1}")
        k(f"v_and_b32 v{t3}, 3, v0")
        k(f"v_lshl_add_u32 v{t1}, v{t3}, 3, v{t1}")
        k(f"v_add_u32 v{t1}, 32768, v{t1}")
        k(f"v_lshrrev_b32 v{t2}, 1, v{t2}")
        k(f"v_and_b32 v{t0}, 1, v{t0}")
        k(f"v_lshl_add_u32 v{t2}, v{t0}, 1, v{t2}")
        for f4 in range(4):
            k(f"v_xor_b32 v{t3}, {f4}, v{t2}")
            k(f"v_lshl_add_u32 v{VT+f4}, v{t3}, 5, v{t1}")
            for sl in range(1, R):
                k(f"v_add_u32 v{VT+4*sl+f4}, {sl*SLOT}, v{VT+f4}")
    ACC = 32
    FA = ACC + 32
    FB = FA + 32
    RES = FB + 16
    NV = RES + 16
    hs = 1024 if which == "K3" else 2048

    def acc(t, mt):
        return ACC + (t * 2 + mt) * 4

    def reads(slot, ks, buf, st):
        out = []
        for mt in range(2):
            r = FB + buf * 8 + mt * 4
            if which == "K5" and 'noB' in OPT: continue
            out.append(T(f"ds_read_b128 v[{r}:{r+3}], v{VB+slot} offset:{ks*8192 + mt*1024}", use=(("B", slot), st)))
        for t in range(4):
            for h in range(2):
                if which == "K5" and 'noA' in OPT and (t or h): continue
                r = FA + buf * 16 + t * 4 + 2 * h
                out.append(T(f"ds_read_b64_tr_b16 v[{r}:{r+1}], v{VT+4*slot+t} offset:{ks*4096 + h*hs}",
                             use=(("A", slot), st)))
        return out

    def mfmas(buf):
        out = []
        for t in range(4):
            for mt in range(2):
                a = FA + buf * 16 + t * 4
                b = FB + buf * 8 + mt * 4
                c = acc(t, mt)
                out.append(T(f"v_mfma_f32_16x16x32_bf16 v[{c}:{c+3}], v[{a}:{a+3}], v[{b}:{b+3}], v[{c}:{c+3}]"))
        return out

    def dma(slot, st):
        gs = []
        for hb in range(2):
            g = [T(f"s_add_u32 m0, s26, {slot*SLOT + hb*4096}")]
            if hb:
                g.append(T("s_add_u32 s28, s24, 4096"))
            for i in range(4):
                g.append(T(f"buffer_load_dwordx4 v{VL}, s[8:11], s{28 if hb else 24} offen offset:{1024*i} lds",
                           fill=(("B", slot), st)))
            if hb:
                g.append(T(f"s_add_u32 s24, s24, {4*128*1024}", bump=True))
            gs.append(g)
        g = [T(f"s_add_u32 m0, s27, {slot*SLOT}")]
        for p in range(4):
            g.append(T(f"buffer_load_dwordx4 v{VA+p}, s[4:7], s25 offen offset:{1024*p} lds", fill=(("A", slot), st)))
        g.append(T(f"s_add_u32 s25, s25, {128*2048}", bump=True))
        gs.append(g)
        return gs

    res_loads = []

    res_st = nst - 2

    def extra(st, ks):
        if st == res_st and ks == 0:
            return [(1 + i // 2, x) for i, x in enumerate(res_loads)]
        return []

    nres = 8 if which == "K3" else 4
    L = Loop(which.lower(), nst, 4, R, 12, reads, mfmas, dma, 30,
             rpos=lambda i, nr, nm: (i * nm) // nr,
             dpos=lambda i, nd, nm: 3 + 2 * i, extra=extra, vm_extra={res_st + 1: nres})
    def out_coords():
        k("s_lshl_b32 s32, s18, 3")
        k("s_lshl_b32 s33, s3, 1")
        k("s_add_u32 s32, s32, s33")
        k("s_lshl_b32 s34, s32, 15")
        k("s_lshl_b32 s35, s19, 7")
        k("s_add_u32 s34, s34, s35")
        k("s_lshl_b32 s35, s19, 8")
        k("s_add_u32 s35, s35, s32")
        k("s_lshl_b32 s35, s35, 10")
        k(f"s_add_u32 s35, s35, {WS_H}")
        k("s_add_u32 s36, s35, 0x20000")
    VR = t0
    karg_wait(k, srds)
    stamp(k, 3)
    L.prologue_dma(k, 0, 1)
    stamp(k, 4)
    frag_addresses()
    out_coords()
    return k, L, dict(VL=VL, ACC=ACC, FA=FA, FB=FB, RES=RES, NV=NV, acc=acc, VR=VR, t1=t1, t2=t2, t3=t3, E=E, R=R, res_loads=res_loads)


def kernel_K3(R=R35, unrolled=False, check=False):
    k, L, c = _common("wo_kernel", "K3", R, unrolled)
    VL, ACC, FA, RES, acc, VR = c["VL"], c["ACC"], c["FA"], c["RES"], c["acc"], c["VR"]
    k(f"v_and_b32 v{VR}, 15, v0")
    k(f"v_lshlrev_b32 v{VR}, 11, v{VR}")
    k(f"v_lshrrev_b32 v{c['t1']}, 4, v0")
    k(f"v_lshl_add_u32 v{VR}, v{c['t1']}, 3, v{VR}")
    k("s_add_u32 s37, s34, 0x8000")
    for mt in range(2):
        for t in range(4):
            r = RES + (mt * 4 + t) * 2
            c["res_loads"].append(T(f"buffer_load_dwordx2 v[{r}:{r+1}], v{VR}, s[12:15], s{37 if mt else 34} offen offset:{32*t}"))
    npf = 0
    if 'nopf3' not in OPT:
        npf = 1
        k("s_lshr_b32 s38, s16, 1")
        k("s_lshl_b32 s38, s38, 3")
        k("s_lshr_b32 s39, s17, 2")
        k("s_add_u32 s38, s38, s39")
        k(f"s_mul_i32 s38, s38, {448*1024}")
        k(f"s_add_u32 s38, s38, {WS_WGU}")
        k("s_and_b32 s39, s17, 3")
        k("s_lshl_b32 s39, s39, 2")
        k("s_add_u32 s39, s39, s3")
        k(f"s_mul_i32 s39, s39, {PF3_LINES*128}")
        k("s_add_u32 s38, s38, s39")
        k("v_lshlrev_b32 v21, 7, v0")
        c["res_loads"].append(T("buffer_load_dword v22, v21, s[8:11], s38 offen"))
        L.vm_extra[L.n - 1] += 1
    for i in range(32):
        k(f"v_mov_b32 v{ACC+i}, 0")
    L.prologue_dma(k, 1)
    L.prologue_sync(k)
    stamp(k, 1)
    L.emit(k, unrolled=unrolled)
    stamp(k, 2)
    k(f"s_waitcnt vmcnt({npf})")
    X = FA
    PK = FA + 16
    RB = FA + 32
    SM = [4, 5]
    M2 = [6, 7]
    for mt in range(2):
        for t in range(4):
            a = acc(t, mt)
            r = RES + (mt * 4 + t) * 2
            k(f"v_lshlrev_b32 v{X+4*t}, 16, v{r}")
            k(f"v_and_b32 v{X+4*t+1}, 0xffff0000, v{r}")
            k(f"v_lshlrev_b32 v{X+4*t+2}, 16, v{r+1}")
            k(f"v_and_b32 v{X+4*t+3}, 0xffff0000, v{r+1}")
            for q in range(4):
                k(f"v_add_f32 v{X+4*t+q}, v{X+4*t+q}, v{a+q}")
            k(f"v_cvt_pk_bf16_f32 v{PK+2*t}, v{X+4*t}, v{X+4*t+1}")
            k(f"v_cvt_pk_bf16_f32 v{PK+2*t+1}, v{X+4*t+2}, v{X+4*t+3}")
        k(f"buffer_store_dwordx4 v[{PK}:{PK+3}], v{VL}, s[8:11], s35 offen offset:{1024*mt}")
        k(f"buffer_store_dwordx4 v[{PK+4}:{PK+7}], v{VL}, s[8:11], s36 offen offset:{1024*mt}")
        for i in range(8):
            k(f"v_lshlrev_b32 v{RB+2*i}, 16, v{PK+i}")
            k(f"v_and_b32 v{RB+2*i+1}, 0xffff0000, v{PK+i}")
        for q in range(4):
            k(f"v_add_f32 v{X+q}, v{RB+q}, v{RB+4+q}")
            k(f"v_add_f32 v{X+4+q}, v{RB+8+q}, v{RB+12+q}")
        for q in range(4):
            k(f"v_add_f32 v{X+q}, v{X+q}, v{X+4+q}")
        k(f"v_add_f32 v{X}, v{X}, v{X+1}")
        k(f"v_add_f32 v{X+2}, v{X+2}, v{X+3}")
        k(f"v_add_f32 v{SM[mt]}, v{X}, v{X+2}")
        allreduce_rows(k, SM[mt], X)
        k(f"v_mul_f32 v{X}, {f2h(1.0/64)}, v{SM[mt]}")
        for i in range(16):
            k(f"v_sub_f32 v{RB+i}, v{RB+i}, v{X}")
        for q in range(4):
            k(f"v_mul_f32 v{X+4+q}, v{RB+q}, v{RB+q}")
        for i in range(4, 16):
            k(f"v_fmac_f32 v{X+4+(i&3)}, v{RB+i}, v{RB+i}")
        k(f"v_add_f32 v{X+4}, v{X+4}, v{X+5}")
        k(f"v_add_f32 v{X+6}, v{X+6}, v{X+7}")
        k(f"v_add_f32 v{M2[mt]}, v{X+4}, v{X+6}")
        allreduce_rows(k, M2[mt], X)
    k("v_bfe_u32 v8, v0, 4, 1")
    k("v_cmp_ne_u32 vcc, 0, v8")
    k(f"v_cndmask_b32 v10, v{SM[0]}, v{SM[1]}, vcc")
    k(f"v_cndmask_b32 v11, v{M2[0]}, v{M2[1]}, vcc")
    k("v_and_b32 v9, 15, v0")
    k("v_lshl_add_u32 v9, v9, 1, v8")
    k("v_lshlrev_b32 v9, 3, v9")
    k("s_lshl_b32 s38, s19, 14")
    k("s_lshl_b32 s39, s32, 7")
    k("s_add_u32 s38, s38, s39")
    k(f"s_add_u32 s38, s38, {WS_STAT}")
    k("buffer_store_dwordx2 v[10:11], v9, s[8:11], s38 offen")
    k(f"{c['E']}:")
    stamp_end(k, 3)
    k("s_endpgm")
    if check:
        check_trace(k.ins, "K3")
        return None
    k.fix_hazards()
    return dict(name="wo_kernel", grid=256, block=256, lds=R * SLOT, kern=k, vgpr=c["NV"], sgpr=96)


def kernel_K5(R=R35, unrolled=False, check=False):
    k, L, c = _common("down_kernel", "K5", R, unrolled)
    VL, ACC, FA, RES, acc, VR = c["VL"], c["ACC"], c["FA"], c["RES"], c["acc"], c["VR"]
    for mt in range(2):
        for sb in range(2):
            r = RES + (mt * 2 + sb) * 4
            c["res_loads"].append(T(f"buffer_load_dwordx4 v[{r}:{r+3}], v{VL}, s[8:11], s{36 if sb else 35} offen offset:{1024*mt}"))
    k(f"v_and_b32 v{VR}, 15, v0")
    k(f"v_lshlrev_b32 v{VR}, 11, v{VR}")
    k(f"v_bfe_u32 v{c['t1']}, v0, 4, 1")
    k(f"v_lshl_add_u32 v{VR}, v{c['t1']}, 5, v{VR}")
    k(f"v_bfe_u32 v{c['t1']}, v0, 5, 1")
    k(f"v_lshl_add_u32 v{VR}, v{c['t1']}, 4, v{VR}")
    k("s_add_u32 s37, s34, 0x8000")
    for i in range(32):
        k(f"v_mov_b32 v{ACC+i}, 0")
    L.prologue_dma(k, 1)
    L.prologue_sync(k)
    stamp(k, 1)
    L.emit(k, unrolled=unrolled)
    stamp(k, 2)
    k("s_waitcnt vmcnt(0)")
    X = FA
    PK = FA + 16
    for mt in range(2):
        for sb in range(2):
            r = RES + (mt * 2 + sb) * 4
            o = PK + (mt * 2 + sb) * 4
            for tt in range(2):
                t = 2 * sb + tt
                a = acc(t, mt)
                x = X + 4 * tt
                k(f"v_lshlrev_b32 v{x}, 16, v{r+2*tt}")
                k(f"v_and_b32 v{x+1}, 0xffff0000, v{r+2*tt}")
                k(f"v_lshlrev_b32 v{x+2}, 16, v{r+2*tt+1}")
                k(f"v_and_b32 v{x+3}, 0xffff0000, v{r+2*tt+1}")
                for q in range(4):
                    k(f"v_add_f32 v{x+q}, v{x+q}, v{a+q}")
            k(f"v_cvt_pk_bf16_f32 v{o}, v{X}, v{X+1}")
            k(f"v_cvt_pk_bf16_f32 v{o+1}, v{X+2}, v{X+3}")
            k(f"v_cvt_pk_bf16_f32 v{o+2}, v{X+4}, v{X+5}")
            k(f"v_cvt_pk_bf16_f32 v{o+3}, v{X+6}, v{X+7}")
            k(f"v_permlane16_swap_b32 v{o}, v{o+2}")
            k(f"v_permlane16_swap_b32 v{o+1}, v{o+3}")
            k(f"buffer_store_dwordx4 v[{o}:{o+3}], v{VR}, s[12:15], s{37 if mt else 34} offen offset:{64*sb}")
    k(f"{c['E']}:")
    stamp_end(k, 5)
    k("s_endpgm")
    if check:
        check_trace(k.ins, "K5")
        return None
    k.fix_hazards()
    return dict(name="down_kernel", grid=256, block=256, lds=R * SLOT, kern=k, vgpr=c["NV"], sgpr=96)
```

```python
from common import *
from gemm import T, Loop
from k_prep import wave_lane
import math, os
K4OPT = os.environ.get('K4OPT', '').split(',')
PF4_WAVES = int(os.environ.get('PF4_WAVES', '1'))
K4ST = os.environ.get('K4ST', 'issue')

SLOT4 = 30720
R4 = 4
CSL = R4 * SLOT4
LDS4 = CSL + 2048


def kernel_K4(unrolled=False, check=False):
    R = R4
    k = Kern("gu_kernel")
    stamp_begin(k)
    k("s_cmp_ge_u32 s2, 256")
    k("s_cbranch_scc1 K4_END")
    srds = [(8, KA_WS, WS_SIZE)]
    karg_issue(k, srds)
    wave_lane(k)
    k("s_and_b32 s16, s2, 7")
    k("s_lshr_b32 s17, s2, 3")
    k("s_and_b32 s18, s16, 1")
    k("s_lshl_b32 s18, s18, 2")
    k("s_and_b32 s19, s17, 3")
    k("s_add_u32 s18, s18, s19")
    k("s_lshr_b32 s19, s16, 1")
    k("s_lshl_b32 s19, s19, 3")
    k("s_lshr_b32 s20, s17, 2")
    k("s_add_u32 s19, s19, s20")
    ACC, FA, FB = 16, 128, 240
    VL, VL2, VB0, VB1 = 1, 2, 3, 4
    P1 = [6, 10]
    P2 = [8, 12]
    ST = FA
    CSR = FA + 56

    def small_loads():
        k("v_lshrrev_b32 v5, 4, v0")
        k("v_lshlrev_b32 v5, 16, v5")
        k("v_and_b32 v15, 15, v0")
        k("v_lshl_add_u32 v5, v15, 4, v5")
        k("s_lshl_b32 s21, s18, 11")
        k("s_lshl_b32 s22, s3, 8")
        k("s_add_u32 s21, s21, s22")
        k(f"s_add_u32 s21, s21, {WS_STAT}")
        for i in range(4):
            r = ST + 4 * i
            k(f"buffer_load_dwordx4 v[{r}:{r+3}], v5, s[8:11], s21 offen")
            if i < 3:
                k("s_add_u32 s21, s21, 16384")
        k("s_cmp_lg_u32 s3, 7")
        k("s_cbranch_scc1 K4_NOCS0")
        k(f"s_mul_i32 s22, s19, {14*64}")
        k(f"s_add_u32 s22, s22, {WS_CS}")
        for kp in range(8):
            k(f"buffer_load_dwordx4 v[{CSR+4*kp}:{CSR+4*kp+3}], v{VL}, s[8:11], s22 offen")
            if kp < 7:
                k(f"s_add_u32 s22, s22, {448*64}")
        k("K4_NOCS0:")
    k("s_lshl_b32 s24, s18, 4")
    k("s_lshl_b32 s25, s3, 2")
    k("s_add_u32 s24, s24, s25")
    k("s_lshl_b32 s24, s24, 10")
    k(f"s_add_u32 s24, s24, {WS_H}")
    k("s_lshl_b32 s26, s3, 12")
    k("s_sub_u32 s27, s25, 16")
    k("s_min_u32 s27, s27, 10")
    k("s_mul_i32 s28, s19, 448")
    k("s_add_u32 s28, s28, s27")
    k("s_lshl_b32 s28, s28, 10")
    k(f"s_add_u32 s28, s28, {WS_WGU}")
    k("s_lshl_b32 s27, s27, 10")
    k("s_add_u32 s27, s27, 16384")
    k(f"s_movk_i32 s31, {14*1024}")
    k("s_cmp_lt_u32 s3, 4")
    k("s_cselect_b32 s24, s24, s28")
    k("s_cselect_b32 s26, s26, s27")
    k(f"s_cselect_b32 s25, {128*1024}, s31")
    k(f"v_lshlrev_b32 v{VL}, 4, v0")
    k(f"v_add_u32 v{VL2}, {2*SLOT4}, v{VL}")
    k("s_lshl_b32 s29, s3, 11")
    k(f"v_add_u32 v{VB0}, s29, v{VL}")
    k(f"v_add_u32 v{VB1}, {2*SLOT4}, v{VB0}")

    def acc(q, mt):
        return ACC + (q * 2 + mt) * 4

    def reads(slot, ks, buf, st):
        out = []
        so = (slot & 1) * SLOT4
        vb = VB1 if slot >= 2 else VB0
        va = VL2 if slot >= 2 else VL
        for mt in range(2):
            r = FB + buf * 8 + mt * 4
            out.append(T(f"ds_read_b128 v[{r}:{r+3}], v{vb} offset:{so + mt*1024}", use=(slot, st)))
        for q in range(14):
            r = FA + buf * 56 + q * 4
            out.append(T(f"ds_read_b128 v[{r}:{r+3}], v{va} offset:{so + 16384 + q*1024}", use=(slot, st)))
        return out

    def mfmas(buf):
        out = []
        for q in range(14):
            for mt in range(2):
                a = FA + buf * 56 + q * 4
                b = FB + buf * 8 + mt * 4
                c = acc(q, mt)
                out.append(T(f"v_mfma_f32_16x16x32_bf16 v[{c}:{c+3}], v[{a}:{a+3}], v[{b}:{b+3}], v[{c}:{c+3}]"))
        return out

    def dma(slot, st):
        g = [T(f"s_add_u32 m0, s26, {slot*SLOT4}")]
        for i in range(4):
            g.append(T(f"buffer_load_dwordx4 v{VL}, s[8:11], s24 offen offset:{1024*i} lds", fill=(slot, st)))
        g.append(T("s_add_u32 s24, s24, s25", bump=True))
        return [g]

    L = Loop("k4", 32, 1, R, 4, reads, mfmas, dma, 30,
             rpos=lambda i, nr, nm: i,
             dpos=lambda i, nd, nm: 18 + 2 * i)
    karg_wait(k, srds)
    stamp(k, 3)
    for g in L.dma(0, 0):
        k.add(g)
    if K4ST == 'd0':
        k("s_waitcnt vmcnt(0)")
        stamp(k, 4)
    small_loads()
    if K4ST == 'd0s':
        k("s_waitcnt vmcnt(0)")
        stamp(k, 4)
    if K4ST == 'issue': stamp(k, 4)
    for i in range(112):
        k(f"v_mov_b32 v{ACC+i}, 0")
    for st in range(1, R - 1):
        for g in L.dma(st, st):
            k.add(g)
    if K4ST == 'zero': stamp(k, 4)
    k(f"s_waitcnt vmcnt({4*(R-2)})")
    if K4ST == 'statw': stamp(k, 4)
    kap = 2.0 * math.sqrt(2.0 / math.pi) * math.log2(math.e)
    streams = []
    for mt in range(2):
        TM = FA + 32 + 12 * mt
        lst = []
        q = lst.append
        r = ST + mt * 2
        q(f"v_add_f32 v{TM}, v{r}, v{r+4}")
        q(f"v_add_f32 v{TM+1}, v{r+8}, v{r+12}")
        q(f"v_add_f32 v{TM}, v{TM}, v{TM+1}")
        allreduce_rows(q, TM, TM + 1)
        q(f"v_mul_f32 v{TM}, {f2h(1.0/1024)}, v{TM}")
        q(f"v_add_f32 v{TM+2}, v{r+1}, v{r+5}")
        q(f"v_add_f32 v{TM+3}, v{r+9}, v{r+13}")
        q(f"v_add_f32 v{TM+2}, v{TM+2}, v{TM+3}")
        for i in range(4):
            q(f"v_mul_f32 v{TM+4+i}, {f2h(1.0/64)}, v{r+4*i}")
            q(f"v_sub_f32 v{TM+4+i}, v{TM+4+i}, v{TM}")
        q(f"v_mul_f32 v{TM+3}, v{TM+4}, v{TM+4}")
        for i in range(1, 4):
            q(f"v_fmac_f32 v{TM+3}, v{TM+4+i}, v{TM+4+i}")
        q(f"v_fmac_f32 v{TM+2}, {f2h(64.0)}, v{TM+3}")
        allreduce_rows(q, TM + 2, TM + 1)
        q(f"v_mov_b32 v{P2[mt]+1}, {f2h(1e-5)}")
        q(f"v_fmac_f32 v{P2[mt]+1}, {f2h(1.0/1024)}, v{TM+2}")
        q(f"v_rsq_f32 v{TM+3}, v{P2[mt]+1}")
        q(f"v_sub_f32 v{P1[mt]}, 0, v{TM}")
        q(f"v_mul_f32 v{P1[mt]+1}, {f2h(-kap)}, v{TM+3}")
        q(f"v_mul_f32 v{TM+4}, v{TM+3}, v{TM+3}")
        q(f"v_mul_f32 v{TM+4}, v{TM+4}, v{P1[mt]+1}")
        q(f"v_mul_f32 v{P2[mt]}, {f2h(0.044715)}, v{TM+4}")
        streams.append(lst)
    for x, y in zip(*streams):
        k(x)
        k(y)
    if K4ST == 'statc': stamp(k, 4)
    k("s_cmp_lg_u32 s3, 7")
    k("s_cbranch_scc1 K4_NOCS1")
    for step in (16, 8, 4):
        for j in range(0, step, 2):
            k(f"v_pk_add_f32 v[{CSR+j}:{CSR+j+1}], v[{CSR+j}:{CSR+j+1}], v[{CSR+step+j}:{CSR+step+j+1}]")
    k(f"v_add_u32 v14, {CSL}, v{VL}")
    k(f"ds_write_b128 v14, v[{CSR}:{CSR+3}]")
    k("K4_NOCS1:")
    k("s_waitcnt lgkmcnt(0)")
    if K4ST == 'cs': stamp(k, 4)
    L.prologue_sync(k)
    stamp(k, 1)
    L.emit(k, unrolled=unrolled)
    stamp(k, 2)
    if 'nopf4' not in K4OPT:
        k("s_load_dwordx2 s[44:45], s[0:1], %d" % KA_WD)
        k("v_lshrrev_b32 v14, 3, v0")
        k("s_lshl_b32 s32, s17, 3")
        k("v_add_u32 v14, s32, v14")
        k("v_lshlrev_b32 v14, 11, v14")
        k("v_and_b32 v15, 7, v0")
        k("v_lshl_add_u32 v14, v15, 7, v14")
        k("s_and_b32 s32, s16, 1")
        k("s_lshl_b32 s32, s32, 10")
        k("s_mul_i32 s33, s3, %d" % (256 * 2048))
        k("s_add_u32 s32, s32, s33")
        k("s_waitcnt lgkmcnt(0)")
        srd_from(k, 4, 44, 3584 * 1024 * 2)
        k("s_cmp_ge_u32 s3, %d" % PF4_WAVES)
        k("s_cbranch_scc1 K4_NOPF")
        k("buffer_load_dword v15, v14, s[4:7], s32 offen")
        k("K4_NOPF:")
    CS = FA
    k("v_lshrrev_b32 v14, 4, v0")
    k("v_lshlrev_b32 v14, 4, v14")
    k(f"v_add_u32 v14, {CSL}, v14")
    for q in range(14):
        k(f"ds_read_b128 v[{CS+4*q}:{CS+4*q+3}], v14 offset:{64*q}")
    k("s_lshr_b32 s32, s19, 1")
    k("s_mul_i32 s32, s32, 7")
    k("s_and_b32 s33, s19, 1")
    k("s_lshl_b32 s34, s33, 2")
    k("s_add_u32 s34, s34, s32")
    k("s_add_u32 s32, s32, 3")
    k("s_lshl_b32 s35, s18, 4")
    k("s_lshl_b32 s36, s3, 1")
    k("s_add_u32 s35, s35, s36")
    k("s_lshl_b32 s34, s34, 7")
    k("s_add_u32 s34, s34, s35")
    k("s_lshl_b32 s34, s34, 10")
    k(f"s_add_u32 s34, s34, {WS_HH}")
    k("s_lshl_b32 s32, s32, 7")
    k("s_add_u32 s32, s32, s35")
    k("s_lshl_b32 s32, s32, 10")
    k("s_lshl_b32 s33, s33, 3")
    k("s_add_u32 s32, s32, s33")
    k(f"s_add_u32 s32, s32, {WS_HH}")
    OUT = [FA + 56, FA + 72]
    TMP = FA + 88
    BC_LO = "op_sel_hi:[1,0,1]"

    def pr(r):
        return f"v[{r}:{r+1}]"

    def stream(pp, mt, hf, tb):
        ag = acc(2 * pp, mt) + 2 * hf
        au = acc(2 * pp + 1, mt) + 2 * hf
        cg = CS + 4 * (2 * pp) + 2 * hf
        cu = CS + 4 * (2 * pp + 1) + 2 * hf
        Tg, Tu, X = tb, tb + 2, tb + 4
        p1, p2 = P1[mt], P2[mt]
        return [
            f"v_pk_fma_f32 {pr(Tg)}, {pr(cg)}, {pr(p1)}, {pr(ag)} op_sel_hi:[1,0,1]",
            f"v_pk_fma_f32 {pr(Tu)}, {pr(cu)}, {pr(p1)}, {pr(au)} op_sel_hi:[1,0,1]",
            f"v_pk_mul_f32 {pr(X)}, {pr(Tg)}, {pr(Tg)}",
            f"v_pk_fma_f32 {pr(X)}, {pr(X)}, {pr(p2)}, {pr(p1)} op_sel:[0,0,1] op_sel_hi:[1,0,1]",
            f"v_pk_mul_f32 {pr(X)}, {pr(X)}, {pr(Tg)}",
            f"v_exp_f32 v{X}, v{X}",
            f"v_exp_f32 v{X+1}, v{X+1}",
            f"v_pk_mul_f32 {pr(Tg)}, {pr(Tg)}, {pr(Tu)}",
            f"v_pk_fma_f32 {pr(X)}, {pr(X)}, {pr(p2)}, {pr(p2)} op_sel:[0,1,1] op_sel_hi:[1,1,1]",
            f"v_rcp_f32 v{X}, v{X}",
            f"v_rcp_f32 v{X+1}, v{X+1}",
            None,
            f"v_pk_mul_f32 {pr(Tg)}, {pr(Tg)}, {pr(X)}",
            f"v_cvt_pk_bf16_f32 v{OUT[mt] + 4*(pp>>1) + 2*(pp&1) + hf}, v{Tg}, v{Tg+1}",
        ]

    k("s_waitcnt lgkmcnt(0)")
    for pp in range(7):
        strs = [stream(pp, mt, hf, TMP + 6 * (2 * hf + mt)) for hf in range(2) for mt in range(2)]
        for i in range(len(strs[0])):
            for sx in strs:
                if sx[i]:
                    k(sx[i])
        if pp in (1, 3, 5):
            b = pp >> 1
            for mt in range(2):
                o = OUT[mt] + 4 * b
                k(f"buffer_store_dwordx4 v[{o}:{o+3}], v{VL}, s[8:11], s34 offen offset:{1024*mt}")
            if pp < 5:
                k("s_add_u32 s34, s34, 0x20000")
        if pp == 6:
            for mt in range(2):
                o = OUT[mt] + 12
                k(f"buffer_store_dwordx2 v[{o}:{o+1}], v{VL}, s[8:11], s32 offen offset:{1024*mt}")
    k("K4_END:")
    stamp_end(k, 4)
    k("s_endpgm")
    if check:
        check_trace(k.ins, "K4")
        return None
    k.fix_hazards()
    return dict(name="gu_kernel", grid=256, block=512, lds=LDS4, kern=k, vgpr=256, sgpr=96)
```
